```python
import torch

def _softmax(x, axis=-1):
    return torch.softmax(x, dim=axis)
def _gelu(x):
    return torch.nn.functional.gelu(x, approximate="tanh")
def _silu(x):
    return torch.nn.functional.silu(x)
def _sigmoid(x):
    return torch.sigmoid(x)
def _layernorm(x, axis=-1, eps=1e-5):
    m = x.mean(dim=axis, keepdim=True)
    v = x.var(dim=axis, keepdim=True, unbiased=False)
    return (x - m) / torch.sqrt(v + eps)
def _scatter_add(tgt, idx, src, axis=0):
    return tgt.clone().index_add_(axis, idx, src)
def _segment_sum(src, seg, n):
    out = torch.zeros((n,) + src.shape[1:], dtype=src.dtype)
    return out.index_add_(0, seg, src)
def _pad(x, pw):
    flat = tuple(v for pair in reversed(pw) for v in pair)
    return torch.nn.functional.pad(x, flat)

kernel_name = 'standalone__gqa_softmax__near_ridge'

def setup_inputs():

    _w = (lambda a: (lambda t: t.to(torch.bfloat16) if t.is_floating_point() else t)(torch.as_tensor(a)))
    B, Hq, Hkv, Sq, Sk, D = 32, 16, 8, 256, 256, 256
    return {
        "q": _w((lambda *s: torch.randn(*s, dtype=torch.bfloat16) * 0.8)(B, Hq, Sq, D)),
        "k": _w((lambda *s: torch.randn(*s, dtype=torch.bfloat16) * 0.8)(B, Hkv, Sk, D)),
        "v": _w((lambda *s: torch.randn(*s, dtype=torch.bfloat16) * 0.05)(B, Hkv, Sk, D)),
    }

def reference(q, k, v):
    B, Hq, Sq, D = q.shape
    Hkv = k.shape[1]
    rep = Hq // Hkv
    k = (lambda x, n, axis: torch.repeat_interleave(x, n, dim=axis))(k, rep, axis=1)
    v = (lambda x, n, axis: torch.repeat_interleave(x, n, dim=axis))(v, rep, axis=1)
    scale = D ** -0.5
    scores = torch.einsum("bhqd,bhkd->bhqk", q, k) * scale
    p = _softmax(scores, axis=-1)
    return torch.einsum("bhqk,bhkd->bhqd", p, v)
```

```python
import sys, argparse

KNAME = "standalone__gqa_softmax__near_ridge_kernel"
HEADER = """; Kernarg layout for this problem (48 bytes, ptrs only, base s[0:1]):
;   offset   0: d_in[0] q  shape=(32, 16, 256, 256) dtype=bfloat16 strides=(2097152, 131072, 512, 2) contiguous=True
;   offset   8: d_in[1] k  shape=(32, 8, 256, 256) dtype=bfloat16 strides=(1048576, 131072, 512, 2) contiguous=True
;   offset  16: d_in[2] v  shape=(32, 8, 256, 256) dtype=bfloat16 strides=(1048576, 131072, 512, 2) contiguous=True
;   offset  24: d_out     shape=(32, 16, 256, 256) dtype=bfloat16 (2 bytes/elem)
;   offset  32: d_debug   256 bytes
;   offset  40: d_ws      268435456 bytes workspace
; One workgroup per (batch, kv-head): 512 q rows x 256 keys x 256 d.  Waves 0-3 hold K (64 keys each) and do
; QK^T + softmax; waves 4-7 hold V^T (64 d columns each) and do PV + output.  Q tiles (32 rows) stream through LDS.
; @launch grid=(256,1,1) block=(512,1,1) lds=163328
.amdgcn_target "amdgcn-amd-amdhsa--gfx950"
.text
.globl %s
.p2align 8
.type %s,@function
%s:
""" % (KNAME, KNAME, KNAME)
FOOTER = """
.section .rodata,"a"
.p2align 6
.amdhsa_kernel %s
  .amdhsa_next_free_vgpr 256
  .amdhsa_next_free_sgpr 96
  .amdhsa_accum_offset 256
  .amdhsa_group_segment_fixed_size 0
  .amdhsa_kernarg_size 48
  .amdhsa_user_sgpr_count 2
  .amdhsa_user_sgpr_kernarg_segment_ptr 1
  .amdhsa_system_sgpr_workgroup_id_x 1
.end_amdhsa_kernel
""" % KNAME

RS = 40832
QS = 4224
P_OFF = 25344
OST = 33792
MAXO = 37888
LSO = 38400
NQ = 6

class G:
    def __init__(s, opt):
        s.o = []; s.lg = []; s.vm = []; s.opt = opt
    def __call__(s, t): s.o.append("    " + t)
    def lab(s, t): s.o.append(t + ":")
    def c(s, t): s.o.append("    ; " + t)
    def lds(s, t, tag=None): s(t); s.lg.append(tag)
    def vmem(s, t, tag=None): s(t); s.vm.append(tag)
    def _n(s, q, tag):
        idx = max(i for i, x in enumerate(q) if x == tag)
        return len(q) - 1 - idx, idx
    def wl(s, tag):
        if tag not in s.lg: return
        n, idx = s._n(s.lg, tag)
        s(f"s_waitcnt lgkmcnt({min(n,15)})"); s.lg = s.lg[idx+1:]
    def wl0(s): s("s_waitcnt lgkmcnt(0)"); s.lg = []
    def wv(s, tag):
        if tag not in s.vm: return
        n, idx = s._n(s.vm, tag)
        assert n <= 63
        s(f"s_waitcnt vmcnt({n})"); s.vm = s.vm[idx+1:]

def vr(b, n): return f"v[{b}:{b+n-1}]"

sW = "s3"
SQ, SK, SV, SO = "s[16:19]", "s[20:23]", "s[24:27]", "s[28:31]"
sT = "s33"; sQoff = "s34"; sP = "s35"; sB = "s36"; sBn = "s37"; sC = "s38"
sRw = "s39"; sTmp = "s40"; sTmp2 = "s41"
sK0 = 44
sQsoff = "s48"; sOsoff = "s49"; sSlot = "s50"; sVs = "s51"
sStamp = 52
SD = "s[56:59]"

def gen(opt):
    g = G(opt); a = g
    ld = opt.ld; st = opt.st
    a("s_cmp_ge_u32 s2, 256"); a("s_cbranch_scc1 L_end")
    a("s_load_dwordx4 s[4:7], s[0:1], 0")
    a("s_load_dwordx4 s[8:11], s[0:1], 16")
    if opt.stamp: a("s_load_dwordx2 s[12:13], s[0:1], 40")
    a("v_lshrrev_b32 v1, 6, v0")
    a("v_and_b32 v2, 63, v0")
    a("v_readfirstlane_b32 s32, v1")
    a("v_and_b32 v3, 31, v2")
    a("v_lshrrev_b32 v4, 5, v2")
    a("v_lshrrev_b32 v5, 3, v2")
    a("v_and_b32 v6, 7, v2")
    a("v_lshrrev_b32 v7, 3, v3")
    a(f"v_mul_u32_u24 v7, {RS}, v7")
    a("v_and_b32 v8, 7, v3")
    a(f"s_and_b32 {sW}, s32, 3")
    a(f"s_mul_i32 {sRw}, {sW}, {RS}")
    a("s_lshl_b32 s14, s2, 18"); a("s_lshl_b32 s15, s2, 17")
    a("s_waitcnt lgkmcnt(0)")
    a("s_add_u32 s16, s4, s14"); a("s_addc_u32 s17, s5, 0"); a("s_mov_b32 s18, 262144"); a("s_mov_b32 s19, 0x20000")
    a("s_add_u32 s20, s6, s15"); a("s_addc_u32 s21, s7, 0"); a("s_mov_b32 s22, 131072"); a("s_mov_b32 s23, 0x20000")
    a("s_add_u32 s24, s8, s15"); a("s_addc_u32 s25, s9, 0"); a("s_mov_b32 s26, 131072"); a("s_mov_b32 s27, 0x20000")
    a("s_add_u32 s28, s10, s14"); a("s_addc_u32 s29, s11, 0"); a("s_mov_b32 s30, 262144"); a("s_mov_b32 s31, 0x20000")
    if opt.stamp:
        a("s_mov_b32 s56, s12"); a("s_mov_b32 s57, s13"); a("s_mov_b32 s58, 0x1000000"); a("s_mov_b32 s59, 0x20000")
        a("v_mov_b32 v30, 0"); a("v_mov_b32 v31, 0")
    a("v_xor_b32 v9, v6, v5"); a("v_lshlrev_b32 v9, 4, v9"); a("v_lshl_add_u32 v9, v5, 7, v9")
    a("v_xor_b32 v10, v4, v8"); a("v_lshlrev_b32 v10, 4, v10"); a("v_lshl_add_u32 v10, v3, 7, v10")
    a(f"s_mov_b32 {sT}, 0"); a(f"s_mov_b32 {sP}, 0"); a(f"s_mov_b32 {sB}, 0"); a(f"s_mov_b32 {sBn}, 256")
    a("s_cmp_ge_u32 s32, 4"); a("s_cbranch_scc1 L_pv")

    def stamp(vreg, idx=None):
        if not opt.stamp: return
        a(f"s_memtime s[{sStamp}:{sStamp+1}]")
        a("s_waitcnt lgkmcnt(0)"); g.lg = []
        if isinstance(idx, int): a(f"s_mov_b32 m0, {idx}")
        else: a(f"s_add_u32 m0, {sT}, 4")
        a("s_nop 1")
        a(f"v_writelane_b32 {vreg}, s{sStamp}, m0")
    def barrier(idx=None):
        stamp("v30", idx)
        a("s_barrier")
        stamp("v31", idx)
    def dump_stamps():
        if not opt.stamp: return
        stamp("v30", 24)
        a("s_lshl_b32 s60, s2, 12"); a("s_lshl_b32 s61, s32, 9"); a("s_add_u32 s60, s60, s61")
        a("v_lshlrev_b32 v29, 2, v2")
        a(f"buffer_store_dword v30, v29, {SD}, s60 offen")
        a(f"buffer_store_dword v31, v29, {SD}, s60 offen offset:256")

    KF = 128; SA = 96; QF = 64; PK = 48
    vQb, vPWb, vStR, vStW = "v11", "v12", "v13", "v14"
    vQ, vPW, vMR, vLW, vMW = "v15", "v16", "v17", "v18", "v19"
    vKg, vKw = "v20", "v21"; vKr = [22, 23, 24, 25]
    vM, vS0, vS1 = "v26", "v27", "v28"
    MX = 32
    g.c("S wave: K loads")
    a("v_lshrrev_b32 v20, 2, v5"); a("v_lshlrev_b32 v20, 3, v20"); a("v_and_b32 v21, 3, v5"); a("v_add_u32 v20, v20, v21")
    a("v_lshlrev_b32 v20, 9, v20"); a("v_lshl_add_u32 v20, v6, 4, v20")
    a(f"s_lshl_b32 s{sK0}, {sW}, 15")
    a(f"s_add_u32 s{sK0+1}, s{sK0}, 8192"); a(f"s_add_u32 s{sK0+2}, s{sK0}, 16384"); a(f"s_add_u32 s{sK0+3}, s{sK0}, 24576")
    stamp("v31", 0)
    for kb in range(2):
        for cg in range(4):
            for i in range(4):
                r = KF + kb*64 + cg*16 + 4*i
                g.vmem(f"buffer_load_dwordx4 {vr(r,4)}, {vKg}, {SK}, s{sK0 + kb*2 + (i>>1)} offen offset:{(i&1)*2048 + 128*cg} {ld}", ("K", kb, cg))
    stamp("v30", 1)
    a("v_lshrrev_b32 v11, 1, v8"); a("v_mul_u32_u24 v11, 1056, v11"); a("v_add_u32 v11, v11, v7")
    a("v_and_b32 v12, 1, v3"); a("v_lshl_add_u32 v11, v12, 9, v11"); a("v_xor_b32 v12, v12, v4"); a("v_lshl_add_u32 v11, v12, 4, v11")
    a("v_mul_u32_u24 v12, 528, v8"); a("v_add_u32 v12, v12, v7"); a("v_lshl_add_u32 v12, v4, 4, v12")
    a(f"s_lshl_b32 {sTmp}, {sW}, 7"); a(f"s_add_u32 {sTmp}, {sTmp}, {P_OFF}"); a(f"v_add_u32 v12, {sTmp}, v12")
    a("v_lshl_add_u32 v13, v8, 5, v7"); a(f"v_add_u32 v13, {MAXO}, v13")
    a(f"s_lshl_b32 {sTmp}, {sW}, 3"); a("v_lshl_add_u32 v14, v4, 2, v13"); a(f"v_add_u32 v14, {sTmp}, v14")
    a(f"s_add_u32 {sTmp}, {sRw}, {P_OFF}")
    a(f"v_add_u32 {vKw}, {sTmp}, v9")
    a(f"v_add_u32 v{vKr[0]}, {sTmp}, v10")
    for j in range(1, 4): a(f"v_xor_b32 v{vKr[j]}, {32*j}, v{vKr[0]}")
    a(f"s_mov_b32 {sC}, 0x3db8aa3b")
    a(f"s_mov_b32 {sQoff}, 0")
    a(f"v_mov_b32 {vQ}, {vQb}")
    a(f"v_mov_b32 {vMW}, {vStW}")
    barrier(2)
    for kb in range(2):
        for cg in range(4):
            base = KF + kb*64 + cg*16
            g.wv(("K", kb, cg))
            for i in range(4): g.lds(f"ds_write_b128 {vKw}, {vr(base+4*i,4)} offset:{1024*i}", "kw")
            g.wl0()
            for j in range(4): g.lds(f"ds_read_b128 {vr(base+4*j,4)}, v{vKr[j]}", "kr")
            g.wl0()
    for s in range(4): g.lds(f"ds_read_b128 {vr(QF+4*s,4)}, {vQ} offset:{32*s}", ("q", s))
    g.wl0()
    a(f"s_mov_b32 {sT}, -1")
    a("s_branch L_s_qk")

    g.lab("L_s_loop")
    g.lg = []
    g.lds(f"ds_read_b128 {vr(MX,4)}, {vMR}", "mx")
    g.lds(f"ds_read_b128 {vr(MX+4,4)}, {vMR} offset:16", "mx")
    for s in range(4): g.lds(f"ds_read_b128 {vr(QF+4*s,4)}, {vQ} offset:{32*s}", ("q", s))
    g.wl("mx")
    a(f"v_max3_f32 {vM}, v{MX}, v{MX+1}, v{MX+2}")
    a(f"v_max3_f32 v{MX+3}, v{MX+3}, v{MX+4}, v{MX+5}")
    a(f"v_max3_f32 {vM}, {vM}, v{MX+6}, v{MX+7}")
    a(f"v_max_f32 {vM}, {vM}, v{MX+3}")
    a(f"v_mul_f32 {vM}, {sC}, {vM}")
    for gi in range(4):
        b = SA + 8*gi
        for i in range(8): a(f"v_fma_f32 v{b+i}, v{b+i}, {sC}, -{vM}")
        for i in range(8): a(f"v_exp_f32 v{b+i}, v{b+i}")
        for n in range(4): a(f"v_cvt_pk_bf16_f32 v{PK+4*gi+n}, v{b+2*n}, v{b+2*n+1}")
        for i in range(8):
            acc = vS0 if i % 2 == 0 else vS1
            if gi == 0 and i < 2: a(f"v_mov_b32 {acc}, v{b+i}")
            else: a(f"v_add_f32 {acc}, {acc}, v{b+i}")
        g.lds(f"ds_write_b128 {vPW}, {vr(PK+4*gi,4)} offset:{32*gi}", "pw")
    a(f"v_add_f32 {vS0}, {vS0}, {vS1}")
    g.lds(f"ds_write_b32 {vLW}, {vS0} offset:512", "lw")
    a(f"s_cmp_eq_u32 {sT}, 15")
    a("s_cbranch_scc1 L_s_done")
    g.lab("L_s_qk")
    for s in range(16):
        g.wl(("q", s))
        qf = vr(QF + 4*(s % 8), 4)
        for kb in range(2):
            acc = vr(SA + 16*kb, 16)
            a(f"v_mfma_f32_32x32x16_bf16 {acc}, {vr(KF + kb*64 + s*4, 4)}, {qf}, {'0' if s == 0 else acc}")
        if s + 4 < 16:
            g.lds(f"ds_read_b128 {vr(QF + 4*((s+4) % 8), 4)}, {vQ} offset:{32*(s+4)}", ("q", s+4))
    a(f"s_add_u32 {sT}, {sT}, 1")
    a(f"s_add_u32 {sQoff}, {sQoff}, {QS}")
    a(f"s_cmp_eq_u32 {sQoff}, {QS*NQ}")
    a(f"s_cselect_b32 {sQoff}, 0, {sQoff}")
    a(f"v_add_u32 {vQ}, {sQoff}, {vQb}")
    a(f"s_and_b32 {sTmp}, {sT}, 1")
    a(f"s_mul_i32 {sP}, {sTmp}, {QS}")
    a(f"s_lshl_b32 {sB}, {sTmp}, 8")
    a(f"s_xor_b32 {sBn}, {sB}, 256")
    a(f"v_add_u32 {vPW}, {sP}, {vPWb}")
    a(f"v_add_u32 {vMR}, {sB}, {vStR}")
    a(f"v_add_u32 {vLW}, {sB}, {vStW}")
    a("s_nop 1")
    a(f"v_max3_f32 {vM}, v{SA}, v{SA+1}, v{SA+2}")
    for i in range(3, 15, 2): a(f"v_max3_f32 {vM}, {vM}, v{SA+i}, v{SA+i+1}")
    a(f"v_max3_f32 {vS0}, v{SA+15}, v{SA+16}, v{SA+17}")
    for i in range(18, 32, 2): a(f"v_max3_f32 {vS0}, {vS0}, v{SA+i}, v{SA+i+1}")
    a(f"v_max_f32 {vM}, {vM}, {vS0}")
    g.lds(f"ds_write_b32 {vMW}, {vM}", "mw")
    a(f"v_add_u32 {vMW}, {sBn}, {vStW}")
    g.wl0()
    if opt.stamp:
        a(f"s_sub_u32 {sT}, {sT}, 1"); barrier(); a(f"s_add_u32 {sT}, {sT}, 1")
    else: barrier()
    a("s_branch L_s_loop")
    g.lab("L_s_done")
    g.wl0()
    barrier()
    dump_stamps()
    a("s_endpgm")

    g.lab("L_pv")
    g.lg = []; g.vm = []
    VF = 128; OA = 96; PF = 64; PKO = 48; RB = 32
    vQg, vVg, vVw, vVt, vPRb, vLRb = "v11", "v12", "v13", "v14", "v15", "v16"
    vPR, vLR, vOr = "v17", "v18", "v19"
    vOw = [20, 21, 22, 23]
    LS = 40
    vL = "v24"
    a("v_xor_b32 v11, v3, v4"); a("v_lshlrev_b32 v11, 4, v11"); a("v_lshl_add_u32 v11, v4, 9, v11")
    a(f"s_lshl_b32 {sTmp}, {sW}, 12"); a(f"v_add_u32 v11, {sTmp}, v11")
    def qdma(tile_soff, slot_expr, tag):
        for i in range(4):
            if isinstance(slot_expr, int): a(f"s_add_u32 m0, {sRw}, {slot_expr*QS + 32*i}")
            else: a(f"s_add_u32 m0, {slot_expr}, {32*i}")
            a("s_nop 0")
            g.vmem(f"buffer_load_dwordx4 {vQg}, {SQ}, {tile_soff} offen offset:{1024*i} {ld} lds", tag)
    def qdma_const(t):
        a(f"s_mov_b32 {sQsoff}, {t*16384}")
        qdma(sQsoff, t % NQ, ("Q", t))
    stamp("v31", 0)
    qdma_const(0)
    a("v_lshlrev_b32 v12, 9, v5"); a("v_lshl_add_u32 v12, v6, 4, v12")
    a(f"s_lshl_b32 {sTmp}, {sW}, 7"); a(f"v_add_u32 v12, {sTmp}, v12")
    a(f"s_add_u32 {sTmp}, {sRw}, {OST}")
    a("v_lshlrev_b32 v13, 4, v2"); a(f"v_add_u32 v13, {sTmp}, v13")
    a("v_bfe_u32 v14, v2, 2, 2"); a("v_lshl_add_u32 v14, v4, 3, v14"); a("v_lshlrev_b32 v14, 7, v14")
    a("v_bfe_u32 v25, v2, 4, 1"); a("v_lshl_add_u32 v14, v25, 5, v14")
    a("v_and_b32 v25, 1, v2"); a("v_lshl_add_u32 v14, v25, 4, v14")
    a("v_bfe_u32 v25, v2, 1, 1"); a("v_lshl_add_u32 v14, v25, 3, v14")
    a(f"v_add_u32 v14, {sTmp}, v14")
    a(f"v_add_u32 {vOr}, {sTmp}, v9")
    a(f"v_add_u32 v{vOw[0]}, {sTmp}, v10")
    for j in range(1, 4): a(f"v_xor_b32 v{vOw[j]}, {32*j}, v{vOw[0]}")
    a("v_mul_u32_u24 v15, 528, v8"); a("v_add_u32 v15, v15, v7"); a("v_lshl_add_u32 v15, v4, 4, v15"); a(f"v_add_u32 v15, {P_OFF}, v15")
    a("v_lshl_add_u32 v16, v8, 5, v7"); a(f"v_add_u32 v16, {LSO}, v16")
    a(f"v_mov_b32 {vPR}, {vPRb}"); a(f"v_mov_b32 {vLR}, {vLRb}")
    g.wv(("Q", 0))
    barrier(2)
    qdma_const(1); qdma_const(2)
    a(f"s_mov_b32 {sVs}, 0")
    vcount = [0]
    def vloads(n):
        for _ in range(n):
            p = vcount[0]
            g.vmem(f"buffer_load_dwordx4 {vr(VF+4*p,4)}, {vVg}, {SV}, {sVs} offen {ld}", ("V", p // 4))
            a(f"s_add_u32 {sVs}, {sVs}, 4096")
            vcount[0] += 1
    vloads(opt.nA)
    g.wv(("Q", 1))
    barrier(3)
    vloads(opt.nB)
    g.wv(("Q", 2))
    barrier(4)
    vloads(32 - opt.nA - opt.nB)
    for t in range(3, 7): qdma_const(t)
    stamp("v30", 1)
    for G_ in range(8):
        base = VF + 16*G_
        g.wv(("V", G_))
        for i in range(4): g.lds(f"ds_write_b128 {vVw}, {vr(base+4*i,4)} offset:{1024*i}", "vw")
        g.wl0()
        for s1 in range(2):
            for blk in range(2):
                for pr in range(2):
                    r = base + (2*s1 + blk)*4 + 2*pr
                    g.lds(f"ds_read_b64_tr_b16 {vr(r,2)}, {vVt} offset:{s1*2048 + pr*512 + 64*blk}", "vr")
        g.wl0()
    stamp("v31", 1)
    a(f"s_mov_b32 {sT}, 1")
    a(f"s_mov_b32 {sQsoff}, {7*16384}")
    a(f"s_add_u32 {sSlot}, {sRw}, {1*QS}")
    a(f"s_mov_b32 {sOsoff}, 0")
    a(f"s_add_u32 {sTmp2}, {sRw}, {NQ*QS}")
    g.lab("L_pv_loop")
    g.lg = []; g.vm = []
    for s in range(4): g.lds(f"ds_read_b128 {vr(PF+4*s,4)}, {vPR} offset:{32*s}", ("p", s))
    g.lds(f"ds_read_b128 {vr(LS,4)}, {vLR}", "ls")
    g.lds(f"ds_read_b128 {vr(LS+4,4)}, {vLR} offset:16", "ls")
    qdma(sQsoff, sSlot, "qn")
    for s in range(16):
        g.wl(("p", s))
        pf = vr(PF + 4*(s % 8), 4)
        for blk in range(2):
            acc = vr(OA + 16*blk, 16)
            a(f"v_mfma_f32_32x32x16_bf16 {acc}, {vr(VF + (2*s+blk)*4, 4)}, {pf}, {'0' if s == 0 else acc}")
        if s + 4 < 16:
            g.lds(f"ds_read_b128 {vr(PF + 4*((s+4) % 8), 4)}, {vPR} offset:{32*(s+4)}", ("p", s+4))
        if s == 2:
            g.wl("ls")
            a(f"v_add_f32 v{LS}, v{LS}, v{LS+1}"); a(f"v_add_f32 v{LS+2}, v{LS+2}, v{LS+3}")
            a(f"v_add_f32 v{LS+4}, v{LS+4}, v{LS+5}"); a(f"v_add_f32 v{LS+6}, v{LS+6}, v{LS+7}")
            a(f"v_add_f32 v{LS}, v{LS}, v{LS+2}"); a(f"v_add_f32 v{LS+4}, v{LS+4}, v{LS+6}")
            a(f"v_add_f32 v{LS}, v{LS}, v{LS+4}")
            a(f"v_rcp_f32 {vL}, v{LS}")
    a(f"s_add_u32 {sQsoff}, {sQsoff}, 16384")
    a(f"s_add_u32 {sSlot}, {sSlot}, {QS}")
    a(f"s_cmp_eq_u32 {sSlot}, {sTmp2}")
    a(f"s_cselect_b32 {sSlot}, {sRw}, {sSlot}")
    a(f"s_xor_b32 {sP}, {sP}, {QS}")
    a(f"s_xor_b32 {sB}, {sB}, 256")
    a(f"v_add_u32 {vPR}, {sP}, {vPRb}")
    a(f"v_add_u32 {vLR}, {sB}, {vLRb}")
    a("s_nop 4")
    for j in range(4):
        b = OA + 8*j
        for i in range(8): a(f"v_mul_f32 v{b+i}, {vL}, v{b+i}")
        for n in range(4): a(f"v_cvt_pk_bf16_f32 v{PKO+4*j+n}, v{b+2*n}, v{b+2*n+1}")
        g.lds(f"ds_write_b128 v{vOw[j]}, {vr(PKO+4*j,4)}", "ow")
    g.wl0()
    for tp in range(4): g.lds(f"ds_read_b128 {vr(RB+4*tp,4)}, {vOr} offset:{1024*tp}", ("or", tp))
    for tp in range(4):
        g.wl(("or", tp))
        g.vmem(f"buffer_store_dwordx4 {vr(RB+4*tp,4)}, {vVg}, {SO}, {sOsoff} offen {st}", "o")
        a(f"s_add_u32 {sOsoff}, {sOsoff}, 4096")
    a(f"s_cmp_eq_u32 {sT}, 16")
    a("s_cbranch_scc1 L_pv_done")
    a(f"s_cmp_ge_u32 {sT}, 5"); a("s_cbranch_scc1 L_w36")
    a(f"s_cmp_eq_u32 {sT}, 4"); a("s_cbranch_scc1 L_w32")
    a(f"s_cmp_eq_u32 {sT}, 3"); a("s_cbranch_scc1 L_w28")
    a(f"s_cmp_eq_u32 {sT}, 2"); a("s_cbranch_scc1 L_w24")
    a("s_waitcnt vmcnt(20)")
    g.lab("L_w24"); a("s_waitcnt vmcnt(24)")
    g.lab("L_w28"); a("s_waitcnt vmcnt(28)")
    g.lab("L_w32"); a("s_waitcnt vmcnt(32)")
    g.lab("L_w36"); a("s_waitcnt vmcnt(36)")
    barrier()
    a(f"s_add_u32 {sT}, {sT}, 1")
    a("s_branch L_pv_loop")
    g.lab("L_pv_done")
    if opt.stamp:
        a("s_waitcnt vmcnt(0)")
    dump_stamps()
    g.lab("L_end")
    a("s_endpgm")
    return HEADER + "\n".join(g.o) + FOOTER

if __name__ == "__main__":
    ap = argparse.ArgumentParser()
    ap.add_argument("-o", default="k1.s")
    ap.add_argument("--ld", default="nt"); ap.add_argument("--st", default="nt")
    ap.add_argument("--nA", type=int, default=8); ap.add_argument("--nB", type=int, default=8)
    ap.add_argument("--stamp", action="store_true")
    opt = ap.parse_args()
    open(opt.o, "w").write(gen(opt))
```

```python
import sys, argparse
from gen1 import HEADER, FOOTER, G, vr, RS, QS, P_OFF, OST, MAXO, LSO, NQ

sW = "s3"
SQ, SK, SV, SO = "s[16:19]", "s[20:23]", "s[24:27]", "s[28:31]"
sT = "s33"; sQoff = "s34"; sC = "s38"
sRw = "s39"; sTmp = "s40"; sWrap = "s41"
sK0 = 44
sQsoff = "s48"; sOsoff = "s49"; sSlot = "s50"; sVs = "s51"
sStamp = 52
SD = "s[56:59]"

def merge(slots, fillers, start, end):
    tot = sum(w for w, _ in fillers)
    n = end - start
    out = []; fi = 0; acc = 0.0
    for i, sl in enumerate(slots):
        out.append(sl)
        if start <= i < end:
            target = tot * (i - start + 1) / n
            while fi < len(fillers) and acc + fillers[fi][0] * 0.5 <= target:
                acc += fillers[fi][0]; out.append(fillers[fi][1]); fi += 1
    while fi < len(fillers): out.append(fillers[fi][1]); fi += 1
    return out

def gen(opt):
    g = G(opt); a = g
    ld = opt.ld; st = opt.st
    a("s_cmp_ge_u32 s2, 256"); a("s_cbranch_scc1 L_end")
    a("s_load_dwordx4 s[4:7], s[0:1], 0")
    a("s_load_dwordx4 s[8:11], s[0:1], 16")
    if opt.stamp: a("s_load_dwordx2 s[12:13], s[0:1], 40")
    a("v_lshrrev_b32 v1, 6, v0")
    a("v_and_b32 v2, 63, v0")
    a("v_readfirstlane_b32 s32, v1")
    a("v_and_b32 v3, 31, v2")
    a("v_lshrrev_b32 v4, 5, v2")
    a("v_lshrrev_b32 v5, 3, v2")
    a("v_and_b32 v6, 7, v2")
    a("v_lshrrev_b32 v7, 3, v3")
    a(f"v_mul_u32_u24 v7, {RS}, v7")
    a("v_and_b32 v8, 7, v3")
    a(f"s_and_b32 {sW}, s32, 3")
    a(f"s_mul_i32 {sRw}, {sW}, {RS}")
    a("s_lshl_b32 s14, s2, 18"); a("s_lshl_b32 s15, s2, 17")
    a("v_xor_b32 v11, v3, v4"); a("v_lshlrev_b32 v11, 4, v11"); a("v_lshl_add_u32 v11, v4, 9, v11")
    a(f"s_lshl_b32 {sTmp}, {sW}, 12"); a(f"v_add_u32 v11, {sTmp}, v11")
    a("s_waitcnt lgkmcnt(0)")
    a("s_add_u32 s16, s4, s14"); a("s_addc_u32 s17, s5, 0"); a("s_mov_b32 s18, 262144"); a("s_mov_b32 s19, 0x20000")
    a("s_add_u32 s20, s6, s15"); a("s_addc_u32 s21, s7, 0"); a("s_mov_b32 s22, 131072"); a("s_mov_b32 s23, 0x20000")
    a("s_add_u32 s24, s8, s15"); a("s_addc_u32 s25, s9, 0"); a("s_mov_b32 s26, 131072"); a("s_mov_b32 s27, 0x20000")
    a("s_add_u32 s28, s10, s14"); a("s_addc_u32 s29, s11, 0"); a("s_mov_b32 s30, 262144"); a("s_mov_b32 s31, 0x20000")
    if opt.stamp:
        a("s_mov_b32 s56, s12"); a("s_mov_b32 s57, s13"); a("s_mov_b32 s58, 0x1000000"); a("s_mov_b32 s59, 0x20000")
        a("v_mov_b32 v30, 0"); a("v_mov_b32 v31, 0")
    vQg = "v11"
    def qdma1(tile_soff, slot_expr, i, tag):
        if isinstance(slot_expr, int): a(f"s_add_u32 m0, {sRw}, {slot_expr*QS + 32*i}")
        else: a(f"s_add_u32 m0, {slot_expr}, {32*i}")
        a("s_nop 0")
        g.vmem(f"buffer_load_dwordx4 {vQg}, {SQ}, {tile_soff} offen offset:{1024*i} {ld} lds", tag)
    def qdma_const(t):
        a(f"s_mov_b32 {sQsoff}, {t*16384}")
        for i in range(4): qdma1(sQsoff, t % NQ, i, ("Q", t))
    def common_addr():
        a("v_xor_b32 v9, v6, v5"); a("v_lshlrev_b32 v9, 4, v9"); a("v_lshl_add_u32 v9, v5, 7, v9")
        a("v_xor_b32 v10, v4, v8"); a("v_lshlrev_b32 v10, 4, v10"); a("v_lshl_add_u32 v10, v3, 7, v10")
    a("s_cmp_ge_u32 s32, 4"); a("s_cbranch_scc1 L_pv")

    def stamp(vreg, idx=None):
        if not opt.stamp: return
        a(f"s_memtime s[{sStamp}:{sStamp+1}]")
        a("s_waitcnt lgkmcnt(0)"); g.lg = []
        if isinstance(idx, int): a(f"s_mov_b32 m0, {idx}")
        else: a(f"s_add_u32 m0, {sT}, 6")
        a("s_nop 1")
        a(f"v_writelane_b32 {vreg}, s{sStamp}, m0")
    def rstamp(idx):
        if not opt.stamp: return
        a(f"s_memrealtime s[{sStamp}:{sStamp+1}]")
        a("s_waitcnt lgkmcnt(0)"); g.lg = []
        a(f"s_mov_b32 m0, {idx}")
        a("s_nop 1")
        a(f"v_writelane_b32 v30, s{sStamp}, m0")
    def fst(r):
        if opt.stamp < 2: return
        sv = list(g.lg)
        stamp(f"v{r}")
        g.lg = sv
    def barrier(idx=None):
        stamp("v30", idx)
        a("s_barrier")
        stamp("v31", idx)
    def dump_stamps():
        if not opt.stamp: return
        stamp("v30", 26); rstamp(31)
        a("s_lshl_b32 s60, s2, 12"); a("s_lshl_b32 s61, s32, 9"); a("s_add_u32 s60, s60, s61")
        a("v_lshlrev_b32 v1, 2, v2")
        a(f"buffer_store_dword v30, v1, {SD}, s60 offen")
        a(f"buffer_store_dword v31, v1, {SD}, s60 offen offset:256")
        if opt.stamp >= 2:
            a("s_lshl_b32 s60, s2, 14"); a("s_lshl_b32 s61, s32, 11"); a("s_add_u32 s60, s60, s61"); a("s_add_u32 s60, s60, 0x100000")
            for r in range(3, 9): a(f"buffer_store_dword v{r}, v1, {SD}, s60 offen offset:{256*(r-3)}")
    I = lambda t: (lambda: a(t))

    KF = 128; SB = [96, 64]; QF = 32; MX = 16
    vQb, vPW, vStR, vStW, vQ = "v12", "v13", "v14", "v15", "v24"
    vKg, vKw = "v16", "v17"; vKr = [18, 19, 20, 21]
    vM, vS0, vS1, vX0, vX1 = "v25", "v26", "v27", "v28", "v29"
    g.c("S wave")
    stamp("v31", 0); rstamp(30)
    qdma_const(0)
    a("v_lshrrev_b32 v16, 2, v5"); a("v_lshlrev_b32 v16, 3, v16"); a("v_and_b32 v17, 3, v5"); a("v_add_u32 v16, v16, v17")
    a("v_lshlrev_b32 v16, 9, v16"); a("v_lshl_add_u32 v16, v6, 4, v16")
    a(f"s_lshl_b32 s{sK0}, {sW}, 15")
    a(f"s_add_u32 s{sK0+1}, s{sK0}, 8192"); a(f"s_add_u32 s{sK0+2}, s{sK0}, 16384"); a(f"s_add_u32 s{sK0+3}, s{sK0}, 24576")
    common_addr()
    a(f"s_add_u32 {sTmp}, {sRw}, {P_OFF}")
    a(f"v_add_u32 {vKw}, {sTmp}, v9")
    a(f"v_add_u32 v{vKr[0]}, {sTmp}, v10")
    for j in range(1, 4): a(f"v_xor_b32 v{vKr[j]}, {32*j}, v{vKr[0]}")
    def kbounce(gidx):
        kb, cg = gidx // 4, gidx % 4
        base = KF + kb*64 + cg*16
        g.wv(("K", kb, cg))
        for i in range(4): g.lds(f"ds_write_b128 {vKw}, {vr(base+4*i,4)} offset:{1024*i}", "kw")
        g.wl0()
        for j in range(4): g.lds(f"ds_read_b128 {vr(base+4*j,4)}, v{vKr[j]}", "kr")
    nb = 0
    for gidx in range(8):
        kb, cg = gidx // 4, gidx % 4
        for i in range(4):
            r = KF + kb*64 + cg*16 + 4*i
            g.vmem(f"buffer_load_dwordx4 {vr(r,4)}, {vKg}, {SK}, s{sK0 + kb*2 + (i>>1)} offen offset:{(i&1)*2048 + 128*cg} {ld}", ("K", kb, cg))
        if gidx >= opt.klag: kbounce(nb); nb += 1
    barrier(1)
    qdma_const(1); qdma_const(2)
    a("v_lshrrev_b32 v12, 1, v8"); a("v_mul_u32_u24 v12, 1056, v12"); a("v_add_u32 v12, v12, v7")
    a("v_and_b32 v13, 1, v3"); a("v_lshl_add_u32 v12, v13, 9, v12"); a("v_xor_b32 v13, v13, v4"); a("v_lshl_add_u32 v12, v13, 4, v12")
    a("v_mul_u32_u24 v13, 528, v8"); a("v_add_u32 v13, v13, v7"); a("v_lshl_add_u32 v13, v4, 4, v13")
    a(f"s_lshl_b32 {sTmp}, {sW}, 7"); a(f"s_add_u32 {sTmp}, {sTmp}, {P_OFF}"); a(f"v_add_u32 v13, {sTmp}, v13")
    a("v_lshl_add_u32 v14, v8, 5, v7"); a(f"v_add_u32 v14, {MAXO}, v14")
    a(f"s_lshl_b32 {sTmp}, {sW}, 3"); a("v_lshl_add_u32 v15, v4, 2, v14"); a(f"v_add_u32 v15, {sTmp}, v15")
    a(f"s_mov_b32 {sC}, 0x3db8aa3b")
    a(f"s_mov_b32 {sQoff}, 0")
    a(f"v_mov_b32 {vQ}, {vQb}")
    while nb < 8: kbounce(nb); nb += 1
    g.wv(("Q", 1))
    g.wl0()
    barrier(2)
    if opt.prio_s: a(f"s_setprio {opt.prio_s}")
    for s in range(4): g.lds(f"ds_read_b128 {vr(QF+4*s,4)}, {vQ} offset:{32*s}", ("q", s))
    g.wl0()
    a(f"s_mov_b32 {sT}, -1")
    a("s_branch L_s_loop1")

    def max_half(Y, kb, acc):
        b = Y + 16*kb
        ops = [f"v_max3_f32 {acc}, v{b}, v{b+1}, v{b+2}"]
        ops += [f"v_max3_f32 {acc}, {acc}, v{b+i}, v{b+i+1}" for i in range(3, 15, 2)]
        ops += [f"v_max_f32 {acc}, {acc}, v{b+15}"]
        return ops
    def softmax_fillers(X, p):
        F = []
        def head():
            g.wl("mx")
            a(f"v_max3_f32 {vM}, v{MX}, v{MX+1}, v{MX+2}")
        F.append((1, head))
        F.append((1, I(f"v_max3_f32 v{MX+3}, v{MX+3}, v{MX+4}, v{MX+5}")))
        F.append((1, I(f"v_max3_f32 {vM}, {vM}, v{MX+6}, v{MX+7}")))
        F.append((1, I(f"v_max_f32 {vM}, {vM}, v{MX+3}")))
        F.append((1, I(f"v_mul_f32 {vM}, {sC}, {vM}")))
        N = 32
        for i in range(N + 6):
            if i < N: F.append((1, I(f"v_fma_f32 v{X+i}, v{X+i}, {sC}, -{vM}")))
            j = i - 2
            if 0 <= j < N: F.append((2, I(f"v_exp_f32 v{X+j}, v{X+j}")))
            k = i - 4
            if 0 <= k < N:
                acc = vS0 if k % 2 == 0 else vS1
                if k < 2: F.append((1, I(f"v_mov_b32 {acc}, v{X+k}")))
                else: F.append((1, I(f"v_add_f32 {acc}, {acc}, v{X+k}")))
            c = i - 5
            if 0 <= c < N and c % 2 == 1:
                gi = c // 8; n = (c % 8) // 2; b = X + 8*gi
                F.append((1, I(f"v_cvt_pk_bf16_f32 v{b+n}, v{b+2*n}, v{b+2*n+1}")))
                if n == 3:
                    F.append((1, (lambda b=b, gi=gi: g.lds(f"ds_write_b128 {vPW}, {vr(b,4)} offset:{QS*p + 32*gi}", "pw"))))
        F.append((1, I(f"v_add_f32 {vS0}, {vS0}, {vS1}")))
        F.append((1, lambda: g.lds(f"ds_write_b32 {vStW}, {vS0} offset:{512 + 256*p}", "lw")))
        return F

    D = opt.skew
    for p in range(2):
        X = SB[p]; Y = SB[p ^ 1]
        g.lab(f"L_s_loop{p}")
        g.lg = []
        g.lds(f"ds_read_b128 {vr(MX,4)}, {vStR} offset:{256*p}", "mx")
        g.lds(f"ds_read_b128 {vr(MX+4,4)}, {vStR} offset:{256*p+16}", "mx")
        if p == 0:
            a(f"s_cmp_lg_u32 {sT}, 0"); a("s_cbranch_scc1 L_s_noq3")
            qdma_const(3)
            g.lab("L_s_noq3")
        else:
            a(f"s_cmp_eq_u32 {sT}, 15"); a("s_cbranch_scc1 L_s_last")
        slots = []
        def mk(kb, s, rd):
            def f():
                if s >= 4: g.wl(("q", s))
                acc = vr(Y + 16*kb, 16)
                a(f"v_mfma_f32_32x32x16_bf16 {acc}, {vr(KF + kb*64 + s*4, 4)}, {vr(QF + 4*(s % 8), 4)}, {'0' if s == 0 else acc}")
                if rd is not None:
                    if rd == 16:
                        a(f"s_add_u32 {sQoff}, {sQoff}, {QS}")
                        a(f"s_cmp_eq_u32 {sQoff}, {QS*NQ}")
                        a(f"s_cselect_b32 {sQoff}, 0, {sQoff}")
                        a(f"v_add_u32 {vQ}, {sQoff}, {vQb}")
                    g.lds(f"ds_read_b128 {vr(QF + 4*(rd % 8), 4)}, {vQ} offset:{32*(rd % 16)}", ("q", rd))
            return f
        order = []
        for s in range(16 + D):
            if s < 16: order.append((0, s))
            if 0 <= s - D < 16: order.append((1, s - D))
        rds = {}
        for f in range(4, 20):
            pos = order.index((0, f - 4))
            if (1, f - 4 - D) in order and order.index((1, f - 4 - D)) == pos + 1: pos += 1
            if f - 8 >= 0: pos = max(pos, order.index((1, f - 8)))
            while pos in rds: pos += 1
            rds[pos] = f
        for i, (kb, s) in enumerate(order): slots.append(mk(kb, s, rds.get(i)))
        F = softmax_fillers(X, p)
        seq = merge(slots, F, opt.s_f0, opt.s_f1)
        for it in seq: it()
        fst(3)
        m0 = max_half(Y, 0, vX0); m1 = max_half(Y, 1, vX1)
        a(f"s_nop {10 - D}")
        for op in m0: a(op)
        a("s_nop 2")
        for op in m1: a(op)
        a(f"v_max_f32 {vX0}, {vX0}, {vX1}")
        g.lds(f"ds_write_b32 {vStW}, {vX0} offset:{256*(p^1)}", "mw")
        a("s_waitcnt vmcnt(0) lgkmcnt(0)"); g.lg = []
        barrier()
        a(f"s_add_u32 {sT}, {sT}, 1")
        if p == 1: a("s_branch L_s_loop0")
    g.lab("L_s_last")
    g.lg = ["mx", "mx"]
    for w_, it in softmax_fillers(SB[1], 1): it()
    g.wl0()
    barrier()
    dump_stamps()
    a("s_endpgm")

    g.lab("L_pv")
    g.lg = []; g.vm = []
    VF = 128; OA = [96, 64]; PF = 32; LS = 22
    vVg, vVw, vVt, vPR, vLR, vOr = "v12", "v13", "v14", "v15", "v16", "v17"
    vOw = [18, 19, 20, 21]
    vL = ["v13", "v14"]
    stamp("v31", 0); rstamp(30)
    a("v_lshlrev_b32 v12, 9, v5"); a("v_lshl_add_u32 v12, v6, 4, v12")
    a(f"s_lshl_b32 {sTmp}, {sW}, 7"); a(f"v_add_u32 v12, {sTmp}, v12")
    a(f"s_mov_b32 {sVs}, 0")
    common_addr()
    a(f"s_add_u32 {sTmp}, {sRw}, {OST}")
    a("v_lshlrev_b32 v13, 4, v2"); a(f"v_add_u32 v13, {sTmp}, v13")
    a("v_bfe_u32 v14, v2, 2, 2"); a("v_lshl_add_u32 v14, v4, 3, v14"); a("v_lshlrev_b32 v14, 7, v14")
    a("v_bfe_u32 v22, v2, 4, 1"); a("v_lshl_add_u32 v14, v22, 5, v14")
    a("v_and_b32 v22, 1, v2"); a("v_lshl_add_u32 v14, v22, 4, v14")
    a("v_bfe_u32 v22, v2, 1, 1"); a("v_lshl_add_u32 v14, v22, 3, v14")
    a(f"v_add_u32 v14, {sTmp}, v14")
    a(f"v_add_u32 {vOr}, {sTmp}, v9")
    a(f"v_add_u32 v{vOw[0]}, {sTmp}, v10")
    for j in range(1, 4): a(f"v_xor_b32 v{vOw[j]}, {32*j}, v{vOw[0]}")
    a("v_mul_u32_u24 v15, 528, v8"); a("v_add_u32 v15, v15, v7"); a("v_lshl_add_u32 v15, v4, 4, v15"); a(f"v_add_u32 v15, {P_OFF}, v15")
    a("v_lshl_add_u32 v16, v8, 5, v7"); a(f"v_add_u32 v16, {LSO}, v16")
    def vload(G_):
        for i in range(4):
            p_ = 4*G_ + i
            g.vmem(f"buffer_load_dwordx4 {vr(VF+4*p_,4)}, {vVg}, {SV}, {sVs} offen {ld}", ("V", G_))
            a(f"s_add_u32 {sVs}, {sVs}, 4096")
    def vbounce(G_):
        base = VF + 16*G_
        g.wv(("V", G_))
        for i in range(4): g.lds(f"ds_write_b128 {vVw}, {vr(base+4*i,4)} offset:{1024*i}", "vw")
        g.wl0()
        for s1 in range(2):
            for blk in range(2):
                for pr in range(2):
                    r = base + (2*s1 + blk)*4 + 2*pr
                    g.lds(f"ds_read_b64_tr_b16 {vr(r,2)}, {vVt} offset:{s1*2048 + pr*512 + 64*blk}", "vr")
    barrier(1)
    for tok in opt.pvpro.split(","):
        if tok[0] == "v": vload(int(tok[1:]))
        elif tok[0] == "g": vbounce(int(tok[1:]))
        elif tok[0] == "q": qdma_const(int(tok[1:]))
        elif tok[0] == "b": barrier(int(tok[1:]))
    g.wl0()
    stamp("v31", 3)
    a(f"s_mov_b32 {sT}, 1")
    a(f"s_mov_b32 {sQsoff}, {7*16384}")
    a(f"s_add_u32 {sSlot}, {sRw}, {1*QS}")
    a(f"s_mov_b32 {sOsoff}, 0x40000000")
    a(f"s_add_u32 {sWrap}, {sRw}, {NQ*QS}")
    if opt.prio_pv: a(f"s_setprio {opt.prio_pv}")
    def epi_fillers(prv, L):
        F = []
        for j in range(4):
            b = prv + 8*j
            for i in range(8): F.append((1, I(f"v_mul_f32 v{b+i}, {L}, v{b+i}")))
            for n in range(4): F.append((1, I(f"v_cvt_pk_bf16_f32 v{b+n}, v{b+2*n}, v{b+2*n+1}")))
            F.append((1, (lambda b=b, j=j: g.lds(f"ds_write_b128 v{vOw[j]}, {vr(b,4)}", "ow"))))
        R = []
        for tp in range(4):
            def rd(tp=tp):
                if tp == 0 and opt.owait: g.wl("ow")
                g.lds(f"ds_read_b128 {vr(prv+8*tp+4,4)}, {vOr} offset:{1024*tp}", ("or", tp))
            R.append((1, rd))
        S = []
        for tp in range(4):
            def sto(tp=tp):
                g.wl(("or", tp))
                a(f"buffer_store_dwordx4 {vr(prv+8*tp+4,4)}, {vVg}, {SO}, {sOsoff} offen {st}")
                a(f"s_add_u32 {sOsoff}, {sOsoff}, 4096")
            S.append((opt.wvm, sto))
        return F, R, S
    for pc in range(2):
        cur = OA[pc]; prv = OA[pc ^ 1]
        po = QS * pc
        g.lab(f"L_pv_loop{pc}")
        g.lg = []; g.vm = []
        if pc == 0:
            a(f"s_cmp_eq_u32 {sT}, 17"); a("s_cbranch_scc1 L_pv_last")
        for s in range(4): g.lds(f"ds_read_b128 {vr(PF+4*s,4)}, {vPR} offset:{po + 32*s}", ("p", s))
        g.lds(f"ds_read_b128 {vr(LS,4)}, {vLR} offset:{256*pc}", "ls")
        g.lds(f"ds_read_b128 {vr(LS+4,4)}, {vLR} offset:{256*pc+16}", "ls")
        slots = [lambda: None]
        for s in range(16):
            for blk in range(2):
                def f(s=s, blk=blk):
                    if blk == 0: g.wl(("p", s))
                    A = vr(cur + 16*blk, 16)
                    a(f"v_mfma_f32_32x32x16_bf16 {A}, {vr(VF + (2*s+blk)*4, 4)}, {vr(PF + 4*(s % 8), 4)}, {'0' if s == 0 else A}")
                    if blk == 1 and s + 4 < 16:
                        g.lds(f"ds_read_b128 {vr(PF + 4*((s+4) % 8), 4)}, {vPR} offset:{po + 32*(s+4)}", ("p", s+4))
                slots.append(f)
        E, R, S = epi_fillers(prv, vL[pc ^ 1])
        Dm = [(opt.wvm, (lambda i=i: qdma1(sQsoff, sSlot, i, "qn"))) for i in range(4)]
        def lsf():
            g.wl("ls")
            a(f"v_add_f32 v{LS}, v{LS}, v{LS+1}")
        Lf = [(1, lsf), (1, I(f"v_add_f32 v{LS+2}, v{LS+2}, v{LS+3}")),
              (1, I(f"v_add_f32 v{LS+4}, v{LS+4}, v{LS+5}")), (1, I(f"v_add_f32 v{LS+6}, v{LS+6}, v{LS+7}")),
              (1, I(f"v_add_f32 v{LS}, v{LS}, v{LS+2}")), (1, I(f"v_add_f32 v{LS+4}, v{LS+4}, v{LS+6}")),
              (1, I(f"v_add_f32 v{LS}, v{LS}, v{LS+4}"))]
        def book():
            a(f"v_rcp_f32 {vL[pc]}, v{LS}")
            a(f"s_add_u32 {sQsoff}, {sQsoff}, 16384")
            a(f"s_add_u32 {sSlot}, {sSlot}, {QS}")
            a(f"s_cmp_eq_u32 {sSlot}, {sWrap}")
            a(f"s_cselect_b32 {sSlot}, {sRw}, {sSlot}")
            if pc == 0:
                a(f"s_cmp_eq_u32 {sT}, 1")
                a(f"s_cselect_b32 {sOsoff}, 0, {sOsoff}")
        if opt.pvord == 0:
            F = E + Dm[:2] + R + Lf + S + Dm[2:] + [(2, book)]
            after = (0, 2)
        elif opt.pvord == 1:
            F = Dm + E + R + Lf + S + [(2, book)]
        else:
            F = E + R + Lf + S + Dm + [(2, book)]
        seq = merge(slots, F, opt.pv_f0, opt.pv_f1)
        for it in seq: it()
        g.wl0()
        fst(7)
        if pc == 1:
            a(f"s_cmp_eq_u32 {sT}, 16"); a(f"s_cbranch_scc1 L_pv_nb{pc}")
        seqv = [("Q", 4)]*4 + [("Q", 5)]*4 + [("Q", 6)]*4
        need = {}
        for t in range(1, 9):
            if opt.pvord == 0: ph = [("Q", t+6)]*2 + [("O", t)]*4 + [("Q", t+6)]*2
            elif opt.pvord == 1: ph = [("Q", t+6)]*4 + [("O", t)]*4
            else: ph = [("O", t)]*4 + [("Q", t+6)]*4
            seqv += ph
            idx = max(i for i, x in enumerate(seqv) if x == ("Q", t+3))
            need[t] = len(seqv) - 1 - idx
        steady = need[8]
        ts = [t for t in range(1, 8) if (t % 2 == 1) == (pc == 0) and need[t] != steady]
        if ts:
            a(f"s_cmp_gt_u32 {sT}, {ts[-1]}"); a(f"s_cbranch_scc1 L_wS_{pc}")
            for t in reversed(ts[1:]):
                a(f"s_cmp_eq_u32 {sT}, {t}"); a(f"s_cbranch_scc1 L_w{t}_{pc}")
            for k, t in enumerate(ts):
                if k: g.lab(f"L_w{t}_{pc}")
                a(f"s_waitcnt vmcnt({need[t]})")
            g.lab(f"L_wS_{pc}")
        a(f"s_waitcnt vmcnt({steady})")
        barrier()
        if pc == 1: g.lab(f"L_pv_nb{pc}")
        a(f"s_add_u32 {sT}, {sT}, 1")
        if pc == 1: a("s_branch L_pv_loop0")
    g.lab("L_pv_last")
    g.lg = []
    a("s_nop 7")
    E, R, S = epi_fillers(OA[1], vL[1])
    for w_, it in E + R + S: it()
    if opt.stamp: a("s_waitcnt vmcnt(0)")
    dump_stamps()
    g.lab("L_end")
    a("s_endpgm")
    return HEADER + "\n".join(g.o) + FOOTER

def parser():
    ap = argparse.ArgumentParser()
    ap.add_argument("-o", default="k3.s")
    ap.add_argument("--ld", default="nt"); ap.add_argument("--st", default="nt")
    ap.add_argument("--stamp", type=int, default=0)
    ap.add_argument("--prio_s", type=int, default=0); ap.add_argument("--prio_pv", type=int, default=0)
    ap.add_argument("--skew", type=int, default=0)
    ap.add_argument("--klag", type=int, default=3)
    ap.add_argument("--s_f0", type=int, default=1); ap.add_argument("--s_f1", type=int, default=31)
    ap.add_argument("--pv_f0", type=int, default=0); ap.add_argument("--pv_f1", type=int, default=24)
    ap.add_argument("--wvm", type=float, default=6)
    ap.add_argument("--pvord", type=int, default=0)
    ap.add_argument("--owait", type=int, default=1)
    ap.add_argument("--pvpro", default="v0,v1,v2,v3,b2,g0,v4,g1,v5,b5,g2,v6,g3,v7,b6,g4,q4,g5,q5,g6,q6,g7")
    return ap
if __name__ == "__main__":
    opt = parser().parse_args()
    open(opt.o, "w").write(gen(opt))
```

```python
import sys, argparse
from gen1 import HEADER, FOOTER, G, vr, RS, QS, P_OFF, OST, MAXO, LSO, NQ

sW = "s3"
SQ, SK, SV, SO = "s[16:19]", "s[20:23]", "s[24:27]", "s[28:31]"
sT = "s33"; sQoff = "s34"; sC = "s38"
sRw = "s39"; sTmp = "s40"; sWrap = "s41"
sK0 = 44
sQsoff = "s48"; sOsoff = "s49"; sSlot = "s50"; sVs = "s51"
sStamp = 52
sQinc = "s42"; sSinc = "s43"; sQc = "s54"
SD = "s[56:59]"

def merge(slots, fillers, start, end):
    tot = sum(w for w, _ in fillers)
    n = end - start
    out = []; fi = 0; acc = 0.0
    for i, sl in enumerate(slots):
        out.append(sl)
        if start <= i < end:
            target = tot * (i - start + 1) / n
            while fi < len(fillers) and acc + fillers[fi][0] * 0.5 <= target:
                acc += fillers[fi][0]; out.append(fillers[fi][1]); fi += 1
    while fi < len(fillers): out.append(fillers[fi][1]); fi += 1
    return out

def gen(opt):
    g = G(opt); a = g
    ld = opt.ld; st = opt.st
    a("s_cmp_ge_u32 s2, 256"); a("s_cbranch_scc1 L_end")
    a("s_load_dwordx4 s[4:7], s[0:1], 0")
    a("s_load_dwordx4 s[8:11], s[0:1], 16")
    if opt.stamp: a("s_load_dwordx2 s[12:13], s[0:1], 40")
    a("v_lshrrev_b32 v1, 6, v0")
    a("v_and_b32 v2, 63, v0")
    a("v_readfirstlane_b32 s32, v1")
    a("v_and_b32 v3, 31, v2")
    a("v_lshrrev_b32 v4, 5, v2")
    a("v_lshrrev_b32 v5, 3, v2")
    a("v_and_b32 v6, 7, v2")
    a("v_lshrrev_b32 v7, 3, v3")
    a(f"v_mul_u32_u24 v7, {RS}, v7")
    a("v_and_b32 v8, 7, v3")
    a(f"s_and_b32 {sW}, s32, 3")
    a(f"s_mul_i32 {sRw}, {sW}, {RS}")
    a("s_lshl_b32 s14, s2, 18"); a("s_lshl_b32 s15, s2, 17")
    a("v_xor_b32 v11, v3, v4"); a("v_lshlrev_b32 v11, 4, v11"); a("v_lshl_add_u32 v11, v4, 9, v11")
    a(f"s_lshl_b32 {sTmp}, {sW}, 12"); a(f"v_add_u32 v11, {sTmp}, v11")
    a("s_waitcnt lgkmcnt(0)")
    a("s_add_u32 s16, s4, s14"); a("s_addc_u32 s17, s5, 0"); a("s_mov_b32 s18, 262144"); a("s_mov_b32 s19, 0x20000")
    a("s_add_u32 s20, s6, s15"); a("s_addc_u32 s21, s7, 0"); a("s_mov_b32 s22, 131072"); a("s_mov_b32 s23, 0x20000")
    a("s_add_u32 s24, s8, s15"); a("s_addc_u32 s25, s9, 0"); a("s_mov_b32 s26, 131072"); a("s_mov_b32 s27, 0x20000")
    a("s_add_u32 s28, s10, s14"); a("s_addc_u32 s29, s11, 0"); a("s_mov_b32 s30, 262144"); a("s_mov_b32 s31, 0x20000")
    if opt.stamp:
        a("s_mov_b32 s56, s12"); a("s_mov_b32 s57, s13"); a("s_mov_b32 s58, 0x1000000"); a("s_mov_b32 s59, 0x20000")
        a("v_mov_b32 v30, 0"); a("v_mov_b32 v31, 0")
    vQg = "v11"
    def qdma1(tile_soff, slot_expr, i, tag):
        if isinstance(slot_expr, int): a(f"s_add_u32 m0, {sRw}, {slot_expr*QS + 32*i}")
        else: a(f"s_add_u32 m0, {slot_expr}, {32*i}")
        a("s_nop 0")
        g.vmem(f"buffer_load_dwordx4 {vQg}, {SQ}, {tile_soff} offen offset:{1024*i} {ld} lds", tag)
    def qdma_const(t):
        a(f"s_mov_b32 {sQc}, {t*16384}")
        for i in range(4): qdma1(sQc, t % NQ, i, ("Q", t))
    def common_addr():
        a("v_xor_b32 v9, v6, v5"); a("v_lshlrev_b32 v9, 4, v9"); a("v_lshl_add_u32 v9, v5, 7, v9")
        a("v_xor_b32 v10, v4, v8"); a("v_lshlrev_b32 v10, 4, v10"); a("v_lshl_add_u32 v10, v3, 7, v10")
    a("s_cmp_ge_u32 s32, 4"); a("s_cbranch_scc1 L_pv")

    def stamp(vreg, idx=None):
        if not opt.stamp: return
        a(f"s_memtime s[{sStamp}:{sStamp+1}]")
        a("s_waitcnt lgkmcnt(0)"); g.lg = []
        if isinstance(idx, int): a(f"s_mov_b32 m0, {idx}")
        else: a(f"s_add_u32 m0, {sT}, 6")
        a("s_nop 1")
        a(f"v_writelane_b32 {vreg}, s{sStamp}, m0")
    def rstamp(idx):
        if not opt.stamp: return
        a(f"s_memrealtime s[{sStamp}:{sStamp+1}]")
        a("s_waitcnt lgkmcnt(0)"); g.lg = []
        a(f"s_mov_b32 m0, {idx}")
        a("s_nop 1")
        a(f"v_writelane_b32 v30, s{sStamp}, m0")
    def fst(r):
        if opt.stamp < 2: return
        sv = list(g.lg)
        stamp(f"v{r}")
        g.lg = sv
    def barrier(idx=None):
        stamp("v30", idx)
        a("s_barrier")
        stamp("v31", idx)
    def dump_stamps():
        if not opt.stamp: return
        stamp("v30", 26); rstamp(31)
        a("s_lshl_b32 s60, s2, 12"); a("s_lshl_b32 s61, s32, 9"); a("s_add_u32 s60, s60, s61")
        a("v_lshlrev_b32 v1, 2, v2")
        a(f"buffer_store_dword v30, v1, {SD}, s60 offen")
        a(f"buffer_store_dword v31, v1, {SD}, s60 offen offset:256")
        if opt.stamp >= 2:
            a("s_lshl_b32 s60, s2, 14"); a("s_lshl_b32 s61, s32, 11"); a("s_add_u32 s60, s60, s61"); a("s_add_u32 s60, s60, 0x100000")
            for r in range(3, 9): a(f"buffer_store_dword v{r}, v1, {SD}, s60 offen offset:{256*(r-3)}")
    I = lambda t: (lambda: a(t))

    KF = 128; SB = [96, 64]; QF = 32; MX = 16
    vQb, vPW, vStR, vStW, vQ = "v12", "v13", "v14", "v15", "v24"
    vKg, vKw = "v16", "v17"; vKr = [18, 19, 20, 21]
    vM, vS0, vS1, vX0, vX1 = "v25", "v26", "v27", "v28", "v29"
    g.c("S wave")
    stamp("v31", 0); rstamp(30)
    qdma_const(0)
    a("v_lshrrev_b32 v16, 2, v5"); a("v_lshlrev_b32 v16, 3, v16"); a("v_and_b32 v17, 3, v5"); a("v_add_u32 v16, v16, v17")
    a("v_lshlrev_b32 v16, 9, v16"); a("v_lshl_add_u32 v16, v6, 4, v16")
    a(f"s_lshl_b32 s{sK0}, {sW}, 15")
    a(f"s_add_u32 s{sK0+1}, s{sK0}, 8192"); a(f"s_add_u32 s{sK0+2}, s{sK0}, 16384"); a(f"s_add_u32 s{sK0+3}, s{sK0}, 24576")
    common_addr()
    a(f"s_add_u32 {sTmp}, {sRw}, {P_OFF}")
    a(f"v_add_u32 {vKw}, {sTmp}, v9")
    a(f"v_add_u32 v{vKr[0]}, {sTmp}, v10")
    for j in range(1, 4): a(f"v_xor_b32 v{vKr[j]}, {32*j}, v{vKr[0]}")
    def kbounce(gidx):
        kb, cg = gidx // 4, gidx % 4
        base = KF + kb*64 + cg*16
        g.wv(("K", kb, cg))
        for i in range(4): g.lds(f"ds_write_b128 {vKw}, {vr(base+4*i,4)} offset:{1024*i}", "kw")
        g.wl0()
        for j in range(4): g.lds(f"ds_read_b128 {vr(base+4*j,4)}, v{vKr[j]}", "kr")
    nb = 0
    for gidx in range(8):
        kb, cg = gidx // 4, gidx % 4
        for i in range(4):
            r = KF + kb*64 + cg*16 + 4*i
            g.vmem(f"buffer_load_dwordx4 {vr(r,4)}, {vKg}, {SK}, s{sK0 + kb*2 + (i>>1)} offen offset:{(i&1)*2048 + 128*cg} {ld}", ("K", kb, cg))
        if gidx >= opt.klag: kbounce(nb); nb += 1
    barrier(1)
    qdma_const(1); qdma_const(2)
    a("v_lshrrev_b32 v12, 1, v8"); a("v_mul_u32_u24 v12, 1056, v12"); a("v_add_u32 v12, v12, v7")
    a("v_and_b32 v13, 1, v3"); a("v_lshl_add_u32 v12, v13, 9, v12"); a("v_xor_b32 v13, v13, v4"); a("v_lshl_add_u32 v12, v13, 4, v12")
    a("v_mul_u32_u24 v13, 528, v8"); a("v_add_u32 v13, v13, v7"); a("v_lshl_add_u32 v13, v4, 4, v13")
    a(f"s_lshl_b32 {sTmp}, {sW}, 7"); a(f"s_add_u32 {sTmp}, {sTmp}, {P_OFF}"); a(f"v_add_u32 v13, {sTmp}, v13")
    a("v_lshl_add_u32 v14, v8, 5, v7"); a(f"v_add_u32 v14, {MAXO}, v14")
    a(f"s_lshl_b32 {sTmp}, {sW}, 3"); a("v_lshl_add_u32 v15, v4, 2, v14"); a(f"v_add_u32 v15, {sTmp}, v15")
    a(f"s_mov_b32 {sC}, 0x3db8aa3b")
    a(f"s_mov_b32 {sQoff}, 0")
    a(f"v_mov_b32 {vQ}, {vQb}")
    while nb < 8: kbounce(nb); nb += 1
    g.wv(("Q", 1))
    g.wl0()
    barrier(2)
    if opt.prio_s: a(f"s_setprio {opt.prio_s}")
    for s in range(4): g.lds(f"ds_read_b128 {vr(QF+4*s,4)}, {vQ} offset:{32*s}", ("q", s))
    g.wl0()
    a(f"s_mov_b32 {sT}, -1")
    if opt.sdma >= 0:
        a(f"s_mov_b32 {sQinc}, 0"); a(f"s_mov_b32 {sSinc}, 0")
        a(f"s_mov_b32 {sQsoff}, 0x40000000"); a(f"s_add_u32 {sSlot}, {sRw}, {5*QS}")
        a(f"s_add_u32 {sWrap}, {sRw}, {NQ*QS}")
    a("s_branch L_s_loop1")

    def max_half(Y, kb, acc):
        b = Y + 16*kb
        ops = [f"v_max3_f32 {acc}, v{b}, v{b+1}, v{b+2}"]
        ops += [f"v_max3_f32 {acc}, {acc}, v{b+i}, v{b+i+1}" for i in range(3, 15, 2)]
        ops += [f"v_max_f32 {acc}, {acc}, v{b+15}"]
        return ops
    def softmax_fillers(X, p):
        F = []
        def head():
            g.wl("mx")
            a(f"v_max3_f32 {vM}, v{MX}, v{MX+1}, v{MX+2}")
        F.append((1, head))
        F.append((1, I(f"v_max3_f32 v{MX+3}, v{MX+3}, v{MX+4}, v{MX+5}")))
        F.append((1, I(f"v_max3_f32 {vM}, {vM}, v{MX+6}, v{MX+7}")))
        F.append((1, I(f"v_max_f32 {vM}, {vM}, v{MX+3}")))
        F.append((1, I(f"v_mul_f32 {vM}, {sC}, {vM}")))
        N = 32
        for i in range(N + 6):
            if i < N: F.append((1, I(f"v_fma_f32 v{X+i}, v{X+i}, {sC}, -{vM}")))
            j = i - 2
            if 0 <= j < N: F.append((2, I(f"v_exp_f32 v{X+j}, v{X+j}")))
            k = i - 4
            if 0 <= k < N:
                acc = vS0 if k % 2 == 0 else vS1
                if k < 2: F.append((1, I(f"v_mov_b32 {acc}, v{X+k}")))
                else: F.append((1, I(f"v_add_f32 {acc}, {acc}, v{X+k}")))
            c = i - 5
            if 0 <= c < N and c % 2 == 1:
                gi = c // 8; n = (c % 8) // 2; b = X + 8*gi
                F.append((1, I(f"v_cvt_pk_bf16_f32 v{b+n}, v{b+2*n}, v{b+2*n+1}")))
                if n == 3:
                    F.append((1, (lambda b=b, gi=gi: g.lds(f"ds_write_b128 {vPW}, {vr(b,4)} offset:{QS*p + 32*gi}", "pw"))))
        F.append((1, I(f"v_add_f32 {vS0}, {vS0}, {vS1}")))
        F.append((1, lambda: g.lds(f"ds_write_b32 {vStW}, {vS0} offset:{512 + 256*p}", "lw")))
        return F

    D = opt.skew
    for p in range(2):
        X = SB[p]; Y = SB[p ^ 1]
        g.lab(f"L_s_loop{p}")
        g.lg = []
        g.lds(f"ds_read_b128 {vr(MX,4)}, {vStR} offset:{256*p}", "mx")
        g.lds(f"ds_read_b128 {vr(MX+4,4)}, {vStR} offset:{256*p+16}", "mx")
        if p == 0:
            a(f"s_cmp_lg_u32 {sT}, 0"); a("s_cbranch_scc1 L_s_noq3")
            qdma_const(3)
            g.lab("L_s_noq3")
        else:
            a(f"s_cmp_eq_u32 {sT}, 15"); a("s_cbranch_scc1 L_s_last")
        slots = []
        def mk(kb, s, rd):
            def f():
                if s >= 4: g.wl(("q", s))
                acc = vr(Y + 16*kb, 16)
                a(f"v_mfma_f32_32x32x16_bf16 {acc}, {vr(KF + kb*64 + s*4, 4)}, {vr(QF + 4*(s % 8), 4)}, {'0' if s == 0 else acc}")
                if rd is not None:
                    if rd == 16:
                        a(f"s_add_u32 {sQoff}, {sQoff}, {QS}")
                        a(f"s_cmp_eq_u32 {sQoff}, {QS*NQ}")
                        a(f"s_cselect_b32 {sQoff}, 0, {sQoff}")
                        a(f"v_add_u32 {vQ}, {sQoff}, {vQb}")
                    g.lds(f"ds_read_b128 {vr(QF + 4*(rd % 8), 4)}, {vQ} offset:{32*(rd % 16)}", ("q", rd))
            return f
        order = []
        for s in range(16 + D):
            if s < 16: order.append((0, s))
            if 0 <= s - D < 16: order.append((1, s - D))
        rds = {}
        for f in range(4, 20):
            pos = order.index((0, f - 4))
            if (1, f - 4 - D) in order and order.index((1, f - 4 - D)) == pos + 1: pos += 1
            if f - 8 >= 0: pos = max(pos, order.index((1, f - 8)))
            while pos in rds: pos += 1
            rds[pos] = f
        for i, (kb, s) in enumerate(order): slots.append(mk(kb, s, rds.get(i)))
        F = softmax_fillers(X, p)
        def sdma(i):
            def f():
                if i == 0:
                    pass
                qdma1(sQsoff, sSlot, i, "qn")
                if i == 3:
                    a(f"s_add_u32 {sQsoff}, {sQsoff}, {sQinc}")
                    a(f"s_add_u32 {sSlot}, {sSlot}, {sSinc}")
                    a(f"s_cmp_eq_u32 {sSlot}, {sWrap}")
                    a(f"s_cselect_b32 {sSlot}, {sRw}, {sSlot}")
            return f
        if opt.sdma >= 0 and opt.sdma < 32:
            for i in range(4):
                k = min(31, opt.sdma + i*opt.sdma_step)
                old = slots[k]
                slots[k] = (lambda old=old, i=i: (old(), sdma(i)()))
        seq = merge(slots, F, opt.s_f0, opt.s_f1)
        for it in seq: it()
        fst(3)
        m0 = max_half(Y, 0, vX0); m1 = max_half(Y, 1, vX1)
        if opt.sdma == 32:
            for i in range(4): sdma(i)()
        else: a(f"s_nop {10 - D}")
        for op in m0: a(op)
        a("s_nop 2")
        for op in m1: a(op)
        a(f"v_max_f32 {vX0}, {vX0}, {vX1}")
        g.lds(f"ds_write_b32 {vStW}, {vX0} offset:{256*(p^1)}", "mw")
        if opt.sdma == 33:
            for i in range(4): sdma(i)()
        if opt.sdma >= 0:
            a(f"s_cmp_eq_u32 {sT}, {0 if p == 0 else -1}"); a(f"s_cbranch_scc0 L_sw{p}")
            a("s_waitcnt vmcnt(0)")
            if p == 0:
                a(f"s_mov_b32 {sQsoff}, {7*16384}"); a(f"s_mov_b32 {sQinc}, 16384"); a(f"s_mov_b32 {sSinc}, {QS}")
                a(f"s_add_u32 {sSlot}, {sRw}, {1*QS}")
            g.lab(f"L_sw{p}")
            a("s_waitcnt vmcnt(12) lgkmcnt(0)"); g.lg = []
        else:
            a("s_waitcnt vmcnt(0) lgkmcnt(0)"); g.lg = []
        barrier()
        a(f"s_add_u32 {sT}, {sT}, 1")
        if p == 1: a("s_branch L_s_loop0")
    g.lab("L_s_last")
    g.lg = ["mx", "mx"]
    for w_, it in softmax_fillers(SB[1], 1): it()
    g.wl0()
    barrier()
    dump_stamps()
    a("s_endpgm")

    g.lab("L_pv")
    g.lg = []; g.vm = []
    VF = 128; OA = [96, 64]; PF = 32; LS = 22
    vVg, vVw, vVt, vPR, vLR, vOr = "v12", "v13", "v14", "v15", "v16", "v17"
    vOw = [18, 19, 20, 21]
    vL = ["v13", "v14"]
    stamp("v31", 0); rstamp(30)
    a("v_lshlrev_b32 v12, 9, v5"); a("v_lshl_add_u32 v12, v6, 4, v12")
    a(f"s_lshl_b32 {sTmp}, {sW}, 7"); a(f"v_add_u32 v12, {sTmp}, v12")
    a(f"s_mov_b32 {sVs}, 0")
    common_addr()
    a(f"s_add_u32 {sTmp}, {sRw}, {OST}")
    a("v_lshlrev_b32 v13, 4, v2"); a(f"v_add_u32 v13, {sTmp}, v13")
    a("v_bfe_u32 v14, v2, 2, 2"); a("v_lshl_add_u32 v14, v4, 3, v14"); a("v_lshlrev_b32 v14, 7, v14")
    a("v_bfe_u32 v22, v2, 4, 1"); a("v_lshl_add_u32 v14, v22, 5, v14")
    a("v_and_b32 v22, 1, v2"); a("v_lshl_add_u32 v14, v22, 4, v14")
    a("v_bfe_u32 v22, v2, 1, 1"); a("v_lshl_add_u32 v14, v22, 3, v14")
    a(f"v_add_u32 v14, {sTmp}, v14")
    a(f"v_add_u32 {vOr}, {sTmp}, v9")
    a(f"v_add_u32 v{vOw[0]}, {sTmp}, v10")
    for j in range(1, 4): a(f"v_xor_b32 v{vOw[j]}, {32*j}, v{vOw[0]}")
    a("v_mul_u32_u24 v15, 528, v8"); a("v_add_u32 v15, v15, v7"); a("v_lshl_add_u32 v15, v4, 4, v15"); a(f"v_add_u32 v15, {P_OFF}, v15")
    a("v_lshl_add_u32 v16, v8, 5, v7"); a(f"v_add_u32 v16, {LSO}, v16")
    def vload(G_):
        for i in range(4):
            p_ = 4*G_ + i
            g.vmem(f"buffer_load_dwordx4 {vr(VF+4*p_,4)}, {vVg}, {SV}, {sVs} offen {ld}", ("V", G_))
            a(f"s_add_u32 {sVs}, {sVs}, 4096")
    def vbounce(G_):
        base = VF + 16*G_
        g.wv(("V", G_))
        for i in range(4): g.lds(f"ds_write_b128 {vVw}, {vr(base+4*i,4)} offset:{1024*i}", "vw")
        g.wl0()
        for s1 in range(2):
            for blk in range(2):
                for pr in range(2):
                    r = base + (2*s1 + blk)*4 + 2*pr
                    g.lds(f"ds_read_b64_tr_b16 {vr(r,2)}, {vVt} offset:{s1*2048 + pr*512 + 64*blk}", "vr")
    barrier(1)
    for tok in opt.pvpro.split(","):
        if tok[0] == "v": vload(int(tok[1:]))
        elif tok[0] == "g": vbounce(int(tok[1:]))
        elif tok[0] == "q": qdma_const(int(tok[1:]))
        elif tok[0] == "b": barrier(int(tok[1:]))
    g.wl0()
    stamp("v31", 3); rstamp(29)
    a(f"s_mov_b32 {sT}, 1")
    a(f"s_mov_b32 {sQsoff}, {7*16384}")
    a(f"s_add_u32 {sSlot}, {sRw}, {1*QS}")
    a(f"s_mov_b32 {sOsoff}, 0x40000000")
    a(f"s_add_u32 {sWrap}, {sRw}, {NQ*QS}")
    if opt.prio_pv: a(f"s_setprio {opt.prio_pv}")
    def epi_fillers(prv, L):
        F = []
        for j in range(4):
            b = prv + 8*j
            for i in range(8): F.append((1, I(f"v_mul_f32 v{b+i}, {L}, v{b+i}")))
            for n in range(4): F.append((1, I(f"v_cvt_pk_bf16_f32 v{b+n}, v{b+2*n}, v{b+2*n+1}")))
            F.append((1, (lambda b=b, j=j: g.lds(f"ds_write_b128 v{vOw[j]}, {vr(b,4)}", "ow"))))
        R = []
        for tp in range(4):
            def rd(tp=tp):
                if tp == 0 and opt.owait: g.wl("ow")
                g.lds(f"ds_read_b128 {vr(prv+8*tp+4,4)}, {vOr} offset:{1024*tp}", ("or", tp))
            R.append((1, rd))
        S = []
        for tp in range(4):
            def sto(tp=tp):
                g.wl(("or", tp))
                a(f"buffer_store_dwordx4 {vr(prv+8*tp+4,4)}, {vVg}, {SO}, {sOsoff} offen {st}")
                a(f"s_add_u32 {sOsoff}, {sOsoff}, 4096")
            S.append((opt.wvm, sto))
        return F, R, S
    for pc in range(2):
        cur = OA[pc]; prv = OA[pc ^ 1]
        po = QS * pc
        g.lab(f"L_pv_loop{pc}")
        g.lg = []; g.vm = []
        if pc == 0:
            a(f"s_cmp_eq_u32 {sT}, 17"); a("s_cbranch_scc1 L_pv_last")
        for s in range(4): g.lds(f"ds_read_b128 {vr(PF+4*s,4)}, {vPR} offset:{po + 32*s}", ("p", s))
        g.lds(f"ds_read_b128 {vr(LS,4)}, {vLR} offset:{256*pc}", "ls")
        g.lds(f"ds_read_b128 {vr(LS+4,4)}, {vLR} offset:{256*pc+16}", "ls")
        slots = [lambda: None]
        for s in range(16):
            for blk in range(2):
                def f(s=s, blk=blk):
                    if blk == 0: g.wl(("p", s))
                    A = vr(cur + 16*blk, 16)
                    a(f"v_mfma_f32_32x32x16_bf16 {A}, {vr(VF + (2*s+blk)*4, 4)}, {vr(PF + 4*(s % 8), 4)}, {'0' if s == 0 else A}")
                    if blk == 1 and s + 4 < 16:
                        g.lds(f"ds_read_b128 {vr(PF + 4*((s+4) % 8), 4)}, {vPR} offset:{po + 32*(s+4)}", ("p", s+4))
                slots.append(f)
        E, R, S = epi_fillers(prv, vL[pc ^ 1])
        Dm = [(opt.wvm, (lambda i=i: qdma1(sQsoff, sSlot, i, "qn"))) for i in range(4)]
        if opt.sdma >= 0: Dm = []
        def lsf():
            g.wl("ls")
            a(f"v_add_f32 v{LS}, v{LS}, v{LS+1}")
        Lf = [(1, lsf), (1, I(f"v_add_f32 v{LS+2}, v{LS+2}, v{LS+3}")),
              (1, I(f"v_add_f32 v{LS+4}, v{LS+4}, v{LS+5}")), (1, I(f"v_add_f32 v{LS+6}, v{LS+6}, v{LS+7}")),
              (1, I(f"v_add_f32 v{LS}, v{LS}, v{LS+2}")), (1, I(f"v_add_f32 v{LS+4}, v{LS+4}, v{LS+6}")),
              (1, I(f"v_add_f32 v{LS}, v{LS}, v{LS+4}"))]
        def book():
            a(f"v_rcp_f32 {vL[pc]}, v{LS}")
            if opt.sdma < 0:
                a(f"s_add_u32 {sQsoff}, {sQsoff}, 16384")
                a(f"s_add_u32 {sSlot}, {sSlot}, {QS}")
                a(f"s_cmp_eq_u32 {sSlot}, {sWrap}")
                a(f"s_cselect_b32 {sSlot}, {sRw}, {sSlot}")
            if pc == 0:
                a(f"s_cmp_eq_u32 {sT}, 1")
                a(f"s_cselect_b32 {sOsoff}, 0, {sOsoff}")
        if opt.pvord == 0:
            F = E + Dm[:2] + R + Lf + S + Dm[2:] + [(2, book)]
            after = (0, 2)
        elif opt.pvord == 1:
            F = Dm + E + R + Lf + S + [(2, book)]
        else:
            F = E + R + Lf + S + Dm + [(2, book)]
        seq = merge(slots, F, opt.pv_f0, opt.pv_f1)
        for it in seq: it()
        g.wl0()
        fst(7)
        if pc == 1:
            a(f"s_cmp_eq_u32 {sT}, 16"); a(f"s_cbranch_scc1 L_pv_nb{pc}")
        seqv = [("Q", 4)]*4 + [("Q", 5)]*4 + [("Q", 6)]*4
        need = {}
        for t in range(1, 9):
            if opt.pvord == 0: ph = [("Q", t+6)]*2 + [("O", t)]*4 + [("Q", t+6)]*2
            elif opt.pvord == 1: ph = [("Q", t+6)]*4 + [("O", t)]*4
            else: ph = [("O", t)]*4 + [("Q", t+6)]*4
            seqv += ph
            idx = max(i for i, x in enumerate(seqv) if x == ("Q", t+3))
            need[t] = len(seqv) - 1 - idx
        steady = need[8]
        if opt.sdma >= 0:
            steady = 12; need = {t: 12 for t in need}
        ts = [t for t in range(1, 8) if (t % 2 == 1) == (pc == 0) and need[t] != steady]
        if ts:
            a(f"s_cmp_gt_u32 {sT}, {ts[-1]}"); a(f"s_cbranch_scc1 L_wS_{pc}")
            for t in reversed(ts[1:]):
                a(f"s_cmp_eq_u32 {sT}, {t}"); a(f"s_cbranch_scc1 L_w{t}_{pc}")
            for k, t in enumerate(ts):
                if k: g.lab(f"L_w{t}_{pc}")
                a(f"s_waitcnt vmcnt({need[t]})")
            g.lab(f"L_wS_{pc}")
        a(f"s_waitcnt vmcnt({steady})")
        barrier()
        if pc == 1: g.lab(f"L_pv_nb{pc}")
        a(f"s_add_u32 {sT}, {sT}, 1")
        if pc == 1: a("s_branch L_pv_loop0")
    g.lab("L_pv_last")
    g.lg = []
    a("s_nop 7")
    E, R, S = epi_fillers(OA[1], vL[1])
    for w_, it in E + R + S: it()
    if opt.stamp: a("s_waitcnt vmcnt(0)")
    dump_stamps()
    g.lab("L_end")
    a("s_endpgm")
    if opt.abl:
        ab = opt.abl.split(",")
        out = []; inloop = False; role = None
        for ln in g.o:
            t = ln.strip()
            if t.startswith("L_s_loop0:"): inloop = True; role = "s"
            if t.startswith("L_pv:"): inloop = False
            if t.startswith("L_pv_loop0:"): inloop = True; role = "pv"
            drop = False
            if inloop:
                if "smx" in ab and role == "s" and t.split()[0] in ("v_fma_f32", "v_exp_f32", "v_add_f32", "v_cvt_pk_bf16_f32", "v_max3_f32", "v_max_f32"): drop = True
                if "exp" in ab and role == "s" and t.startswith("v_exp_f32"): drop = True
                if "qrd" in ab and role == "s" and t.startswith("ds_read_b128") and ", v24 " in t: drop = True
                if "prd" in ab and role == "pv" and t.startswith("ds_read_b128") and ", v15 " in t: drop = True
                if "pw" in ab and role == "s" and t.startswith("ds_write_b128"): drop = True
                if "epi" in ab and role == "pv" and (t.split()[0] in ("v_mul_f32", "v_cvt_pk_bf16_f32", "ds_write_b128") or (t.startswith("ds_read_b128") and ", v17 " in t)): drop = True
                if "st" in ab and t.startswith("buffer_store_dwordx4"): drop = True
                if "dma" in ab and t.startswith("buffer_load_dwordx4") and t.endswith("lds"): drop = True
                if "mfs" in ab and role == "s" and t.startswith("v_mfma"): drop = True
                if "mfp" in ab and role == "pv" and t.startswith("v_mfma"): drop = True
            if drop: continue
            if inloop and t.startswith("s_waitcnt lgkmcnt(") and any(x in ab for x in ("qrd", "prd", "pw", "epi")) and "lgkmcnt(0)" not in t:
                ln = "    s_waitcnt lgkmcnt(4)"
            out.append(ln)
        g.o = out
    return HEADER + "\n".join(g.o) + FOOTER

def parser():
    ap = argparse.ArgumentParser()
    ap.add_argument("-o", default="k3.s")
    ap.add_argument("--ld", default="nt"); ap.add_argument("--st", default="nt")
    ap.add_argument("--stamp", type=int, default=0)
    ap.add_argument("--prio_s", type=int, default=0); ap.add_argument("--prio_pv", type=int, default=0)
    ap.add_argument("--skew", type=int, default=0)
    ap.add_argument("--klag", type=int, default=3)
    ap.add_argument("--s_f0", type=int, default=1); ap.add_argument("--s_f1", type=int, default=31)
    ap.add_argument("--pv_f0", type=int, default=0); ap.add_argument("--pv_f1", type=int, default=24)
    ap.add_argument("--wvm", type=float, default=6)
    ap.add_argument("--pvord", type=int, default=0)
    ap.add_argument("--owait", type=int, default=1)
    ap.add_argument("--abl", default="")
    ap.add_argument("--sdma", type=int, default=-1); ap.add_argument("--sdma_step", type=int, default=4)
    ap.add_argument("--pvpro", default="v0,v1,v2,v3,b2,g0,v4,g1,v5,b5,g2,v6,g3,v7,b6,g4,q4,g5,q5,g6,q6,g7")
    return ap
if __name__ == "__main__":
    opt = parser().parse_args()
    open(opt.o, "w").write(gen(opt))
```

```python
import sys, argparse
from gen1 import HEADER, FOOTER, G, vr, RS, QS, P_OFF, OST, MAXO, LSO, NQ

sW = "s3"
SQ, SK, SV, SO = "s[16:19]", "s[20:23]", "s[24:27]", "s[28:31]"
sT = "s33"; sQoff = "s34"; sC = "s38"
sRw = "s39"; sTmp = "s40"; sWrap = "s41"
sK0 = 44
sQsoff = "s48"; sOsoff = "s49"; sSlot = "s50"; sVs = "s51"
sStamp = 52
sQinc = "s42"; sSinc = "s43"; sQc = "s54"
SD = "s[56:59]"

def merge(slots, fillers, start, end):
    tot = sum(w for w, _ in fillers)
    n = end - start
    out = []; fi = 0; acc = 0.0
    for i, sl in enumerate(slots):
        out.append(sl)
        if start <= i < end:
            target = tot * (i - start + 1) / n
            while fi < len(fillers) and acc + fillers[fi][0] * 0.5 <= target:
                acc += fillers[fi][0]; out.append(fillers[fi][1]); fi += 1
    while fi < len(fillers): out.append(fillers[fi][1]); fi += 1
    return out

def gen(opt):
    g = G(opt); a = g
    ld = opt.ld; st = opt.st
    a("s_cmp_ge_u32 s2, 256"); a("s_cbranch_scc1 L_end")
    a("s_load_dwordx4 s[4:7], s[0:1], 0")
    a("s_load_dwordx4 s[8:11], s[0:1], 16")
    if opt.stamp: a("s_load_dwordx2 s[12:13], s[0:1], 40")
    if opt.dbg:
        a("s_load_dwordx2 s[62:63], s[0:1], 32")
        a("s_memrealtime s[64:65]"); a("s_memtime s[66:67]")
    a("v_lshrrev_b32 v1, 6, v0")
    a("v_and_b32 v2, 63, v0")
    a("v_readfirstlane_b32 s32, v1")
    a("v_and_b32 v3, 31, v2")
    a("v_lshrrev_b32 v4, 5, v2")
    a("v_lshrrev_b32 v5, 3, v2")
    a("v_and_b32 v6, 7, v2")
    a("v_lshrrev_b32 v7, 3, v3")
    a(f"v_mul_u32_u24 v7, {RS}, v7")
    a("v_and_b32 v8, 7, v3")
    a(f"s_and_b32 {sW}, s32, 3")
    a(f"s_mul_i32 {sRw}, {sW}, {RS}")
    a("s_lshl_b32 s14, s2, 18"); a("s_lshl_b32 s15, s2, 17")
    a("v_xor_b32 v11, v3, v4"); a("v_lshlrev_b32 v11, 4, v11"); a("v_lshl_add_u32 v11, v4, 9, v11")
    a(f"s_lshl_b32 {sTmp}, {sW}, 12"); a(f"v_add_u32 v11, {sTmp}, v11")
    a("s_waitcnt lgkmcnt(0)")
    a("s_add_u32 s16, s4, s14"); a("s_addc_u32 s17, s5, 0"); a("s_mov_b32 s18, 262144"); a("s_mov_b32 s19, 0x20000")
    a("s_add_u32 s20, s6, s15"); a("s_addc_u32 s21, s7, 0"); a("s_mov_b32 s22, 131072"); a("s_mov_b32 s23, 0x20000")
    a("s_add_u32 s24, s8, s15"); a("s_addc_u32 s25, s9, 0"); a("s_mov_b32 s26, 131072"); a("s_mov_b32 s27, 0x20000")
    a("s_add_u32 s28, s10, s14"); a("s_addc_u32 s29, s11, 0"); a("s_mov_b32 s30, 262144"); a("s_mov_b32 s31, 0x20000")
    if opt.stamp:
        a("s_mov_b32 s56, s12"); a("s_mov_b32 s57, s13"); a("s_mov_b32 s58, 0x1000000"); a("s_mov_b32 s59, 0x20000")
        a("v_mov_b32 v30, 0"); a("v_mov_b32 v31, 0")
    vQg = "v11"
    def qdma1(tile_soff, slot_expr, i, tag):
        if isinstance(slot_expr, int): a(f"s_add_u32 m0, {sRw}, {slot_expr*QS + 32*i}")
        else: a(f"s_add_u32 m0, {slot_expr}, {32*i}")
        a("s_nop 0")
        g.vmem(f"buffer_load_dwordx4 {vQg}, {SQ}, {tile_soff} offen offset:{1024*i} {ld} lds", tag)
    def qdma_const(t):
        a(f"s_mov_b32 {sQc}, {t*16384}")
        for i in range(4): qdma1(sQc, t % NQ, i, ("Q", t))
    def common_addr():
        a("v_xor_b32 v9, v6, v5"); a("v_lshlrev_b32 v9, 4, v9"); a("v_lshl_add_u32 v9, v5, 7, v9")
        a("v_xor_b32 v10, v4, v8"); a("v_lshlrev_b32 v10, 4, v10"); a("v_lshl_add_u32 v10, v3, 7, v10")
    a("s_cmp_ge_u32 s32, 4"); a("s_cbranch_scc1 L_pv")

    def stamp(vreg, idx=None):
        if not opt.stamp: return
        a(f"s_memtime s[{sStamp}:{sStamp+1}]")
        a("s_waitcnt lgkmcnt(0)"); g.lg = []
        if isinstance(idx, int): a(f"s_mov_b32 m0, {idx}")
        else: a(f"s_add_u32 m0, {sT}, 6")
        a("s_nop 1")
        a(f"v_writelane_b32 {vreg}, s{sStamp}, m0")
    def rstamp(idx):
        if not opt.stamp: return
        a(f"s_memrealtime s[{sStamp}:{sStamp+1}]")
        a("s_waitcnt lgkmcnt(0)"); g.lg = []
        a(f"s_mov_b32 m0, {idx}")
        a("s_nop 1")
        a(f"v_writelane_b32 v30, s{sStamp}, m0")
    def fst(r):
        if opt.stamp < 2: return
        sv = list(g.lg)
        stamp(f"v{r}")
        g.lg = sv
    def barrier(idx=None):
        stamp("v30", idx)
        a("s_barrier")
        stamp("v31", idx)
    def dump_stamps():
        if not opt.stamp: return
        stamp("v30", 26); rstamp(31)
        a("s_lshl_b32 s60, s2, 12"); a("s_lshl_b32 s61, s32, 9"); a("s_add_u32 s60, s60, s61")
        a("v_lshlrev_b32 v1, 2, v2")
        a(f"buffer_store_dword v30, v1, {SD}, s60 offen")
        a(f"buffer_store_dword v31, v1, {SD}, s60 offen offset:256")
        if opt.stamp >= 2:
            a("s_lshl_b32 s60, s2, 14"); a("s_lshl_b32 s61, s32, 11"); a("s_add_u32 s60, s60, s61"); a("s_add_u32 s60, s60, 0x100000")
            for r in range(3, 9): a(f"buffer_store_dword v{r}, v1, {SD}, s60 offen offset:{256*(r-3)}")
    I = lambda t: (lambda: a(t))

    KF = 128; SB = [96, 64]; QF = 32; MX = 16
    vQb, vPW, vStR, vStW, vQ = "v12", "v13", "v14", "v15", "v24"
    vKg, vKw = "v16", "v17"; vKr = [18, 19, 20, 21]
    vM, vS0, vS1, vX0, vX1 = "v25", "v26", "v27", "v28", "v29"
    g.c("S wave")
    stamp("v31", 0); rstamp(30)
    qdma_const(0)
    a("v_lshrrev_b32 v16, 2, v5"); a("v_lshlrev_b32 v16, 3, v16"); a("v_and_b32 v17, 3, v5"); a("v_add_u32 v16, v16, v17")
    a("v_lshlrev_b32 v16, 9, v16"); a("v_lshl_add_u32 v16, v6, 4, v16")
    a(f"s_lshl_b32 s{sK0}, {sW}, 15")
    a(f"s_add_u32 s{sK0+1}, s{sK0}, 8192"); a(f"s_add_u32 s{sK0+2}, s{sK0}, 16384"); a(f"s_add_u32 s{sK0+3}, s{sK0}, 24576")
    common_addr()
    a(f"s_add_u32 {sTmp}, {sRw}, {P_OFF}")
    a(f"v_add_u32 {vKw}, {sTmp}, v9")
    a(f"v_add_u32 v{vKr[0]}, {sTmp}, v10")
    for j in range(1, 4): a(f"v_xor_b32 v{vKr[j]}, {32*j}, v{vKr[0]}")
    def kbounce(gidx):
        kb, cg = gidx // 4, gidx % 4
        base = KF + kb*64 + cg*16
        g.wv(("K", kb, cg))
        for i in range(4): g.lds(f"ds_write_b128 {vKw}, {vr(base+4*i,4)} offset:{1024*i}", "kw")
        g.wl0()
        for j in range(4): g.lds(f"ds_read_b128 {vr(base+4*j,4)}, v{vKr[j]}", "kr")
    nb = 0
    for gidx in range(8):
        kb, cg = gidx // 4, gidx % 4
        for i in range(4):
            r = KF + kb*64 + cg*16 + 4*i
            g.vmem(f"buffer_load_dwordx4 {vr(r,4)}, {vKg}, {SK}, s{sK0 + kb*2 + (i>>1)} offen offset:{(i&1)*2048 + 128*cg} {ld}", ("K", kb, cg))
        if gidx >= opt.klag: kbounce(nb); nb += 1
    barrier(1)
    qdma_const(1); qdma_const(2)
    a("v_lshrrev_b32 v12, 1, v8"); a("v_mul_u32_u24 v12, 1056, v12"); a("v_add_u32 v12, v12, v7")
    a("v_and_b32 v13, 1, v3"); a("v_lshl_add_u32 v12, v13, 9, v12"); a("v_xor_b32 v13, v13, v4"); a("v_lshl_add_u32 v12, v13, 4, v12")
    a("v_mul_u32_u24 v13, 528, v8"); a("v_add_u32 v13, v13, v7"); a("v_lshl_add_u32 v13, v4, 4, v13")
    a(f"s_lshl_b32 {sTmp}, {sW}, 7"); a(f"s_add_u32 {sTmp}, {sTmp}, {P_OFF}"); a(f"v_add_u32 v13, {sTmp}, v13")
    a("v_lshl_add_u32 v14, v8, 5, v7"); a(f"v_add_u32 v14, {MAXO}, v14")
    a(f"s_lshl_b32 {sTmp}, {sW}, 3"); a("v_lshl_add_u32 v15, v4, 2, v14"); a(f"v_add_u32 v15, {sTmp}, v15")
    a(f"s_mov_b32 {sC}, 0x3db8aa3b")
    a(f"s_mov_b32 {sQoff}, 0")
    a(f"v_mov_b32 {vQ}, {vQb}")
    while nb < 8: kbounce(nb); nb += 1
    g.wv(("Q", 1))
    g.wl0()
    barrier(2)
    if opt.prio_s: a(f"s_setprio {opt.prio_s}")
    for s in range(4): g.lds(f"ds_read_b128 {vr(QF+4*s,4)}, {vQ} offset:{32*s}", ("q", s))
    g.wl0()
    a(f"s_mov_b32 {sT}, -1")
    if opt.sdma >= 0:
        a(f"s_mov_b32 {sQinc}, 0"); a(f"s_mov_b32 {sSinc}, 0")
        a(f"s_mov_b32 {sQsoff}, 0x40000000"); a(f"s_add_u32 {sSlot}, {sRw}, {5*QS}")
        a(f"s_add_u32 {sWrap}, {sRw}, {NQ*QS}")
    a("s_branch L_s_loop1")

    def max_half(Y, kb, acc):
        b = Y + 16*kb
        ops = [f"v_max3_f32 {acc}, v{b}, v{b+1}, v{b+2}"]
        ops += [f"v_max3_f32 {acc}, {acc}, v{b+i}, v{b+i+1}" for i in range(3, 15, 2)]
        ops += [f"v_max_f32 {acc}, {acc}, v{b+15}"]
        return ops
    def softmax_fillers(X, p):
        F = []
        def head():
            g.wl("mx")
            a(f"v_max3_f32 {vM}, v{MX}, v{MX+1}, v{MX+2}")
        F.append((1, head))
        F.append((1, I(f"v_max3_f32 v{MX+3}, v{MX+3}, v{MX+4}, v{MX+5}")))
        F.append((1, I(f"v_max3_f32 {vM}, {vM}, v{MX+6}, v{MX+7}")))
        F.append((1, I(f"v_max_f32 {vM}, {vM}, v{MX+3}")))
        F.append((1, I(f"v_mul_f32 {vM}, {sC}, {vM}")))
        N = 32
        for i in range(N + 6):
            if i < N: F.append((1, I(f"v_fma_f32 v{X+i}, v{X+i}, {sC}, -{vM}")))
            j = i - 2
            if 0 <= j < N: F.append((2, I(f"v_exp_f32 v{X+j}, v{X+j}")))
            k = i - 4
            if 0 <= k < N:
                acc = vS0 if k % 2 == 0 else vS1
                if k < 2: F.append((1, I(f"v_mov_b32 {acc}, v{X+k}")))
                else: F.append((1, I(f"v_add_f32 {acc}, {acc}, v{X+k}")))
            c = i - 5
            if 0 <= c < N and c % 2 == 1:
                gi = c // 8; n = (c % 8) // 2; b = X + 8*gi
                F.append((1, I(f"v_cvt_pk_bf16_f32 v{b+n}, v{b+2*n}, v{b+2*n+1}")))
                if n == 3:
                    F.append((1, (lambda b=b, gi=gi: g.lds(f"ds_write_b128 {vPW}, {vr(b,4)} offset:{QS*p + 32*gi}", "pw"))))
        F.append((1, I(f"v_add_f32 {vS0}, {vS0}, {vS1}")))
        F.append((1, lambda: g.lds(f"ds_write_b32 {vStW}, {vS0} offset:{512 + 256*p}", "lw")))
        return F

    D = opt.skew
    for p in range(2):
        X = SB[p]; Y = SB[p ^ 1]
        g.lab(f"L_s_loop{p}")
        g.lg = []
        g.lds(f"ds_read_b128 {vr(MX,4)}, {vStR} offset:{256*p}", "mx")
        g.lds(f"ds_read_b128 {vr(MX+4,4)}, {vStR} offset:{256*p+16}", "mx")
        if p == 0:
            a(f"s_cmp_lg_u32 {sT}, 0"); a("s_cbranch_scc1 L_s_noq3")
            qdma_const(3)
            g.lab("L_s_noq3")
        else:
            a(f"s_cmp_eq_u32 {sT}, 15"); a("s_cbranch_scc1 L_s_last")
        slots = []
        def mk(kb, s, rd):
            def f():
                if s >= 4: g.wl(("q", s))
                acc = vr(Y + 16*kb, 16)
                a(f"v_mfma_f32_32x32x16_bf16 {acc}, {vr(KF + kb*64 + s*4, 4)}, {vr(QF + 4*(s % 8), 4)}, {'0' if s == 0 else acc}")
                if rd is not None:
                    if rd == 16:
                        a(f"s_add_u32 {sQoff}, {sQoff}, {QS}")
                        a(f"s_cmp_eq_u32 {sQoff}, {QS*NQ}")
                        a(f"s_cselect_b32 {sQoff}, 0, {sQoff}")
                        a(f"v_add_u32 {vQ}, {sQoff}, {vQb}")
                    g.lds(f"ds_read_b128 {vr(QF + 4*(rd % 8), 4)}, {vQ} offset:{32*(rd % 16)}", ("q", rd))
            return f
        order = []
        for s in range(16 + D):
            if s < 16: order.append((0, s))
            if 0 <= s - D < 16: order.append((1, s - D))
        rds = {}
        for f in range(4, 20):
            pos = order.index((0, f - 4))
            if (1, f - 4 - D) in order and order.index((1, f - 4 - D)) == pos + 1: pos += 1
            if f - 8 >= 0: pos = max(pos, order.index((1, f - 8)))
            while pos in rds: pos += 1
            rds[pos] = f
        for i, (kb, s) in enumerate(order): slots.append(mk(kb, s, rds.get(i)))
        F = softmax_fillers(X, p)
        def sdma(i):
            def f():
                if i == 0:
                    pass
                qdma1(sQsoff, sSlot, i, "qn")
                if i == 3:
                    a(f"s_add_u32 {sQsoff}, {sQsoff}, {sQinc}")
                    a(f"s_add_u32 {sSlot}, {sSlot}, {sSinc}")
                    a(f"s_cmp_eq_u32 {sSlot}, {sWrap}")
                    a(f"s_cselect_b32 {sSlot}, {sRw}, {sSlot}")
            return f
        if opt.sdma >= 0 and opt.sdma < 32:
            for i in range(4):
                k = min(31, opt.sdma + i*opt.sdma_step)
                old = slots[k]
                slots[k] = (lambda old=old, i=i: (old(), sdma(i)()))
        seq = merge(slots, F, opt.s_f0, opt.s_f1)
        for it in seq: it()
        fst(3)
        m0 = max_half(Y, 0, vX0); m1 = max_half(Y, 1, vX1)
        if opt.sdma == 32:
            for i in range(4): sdma(i)()
        else: a(f"s_nop {10 - D}")
        for op in m0: a(op)
        a("s_nop 2")
        for op in m1: a(op)
        a(f"v_max_f32 {vX0}, {vX0}, {vX1}")
        g.lds(f"ds_write_b32 {vStW}, {vX0} offset:{256*(p^1)}", "mw")
        if opt.sdma == 33:
            for i in range(4): sdma(i)()
        if opt.sdma >= 0:
            a(f"s_cmp_eq_u32 {sT}, {0 if p == 0 else -1}"); a(f"s_cbranch_scc0 L_sw{p}")
            a("s_waitcnt vmcnt(0)")
            if p == 0:
                a(f"s_mov_b32 {sQsoff}, {7*16384}"); a(f"s_mov_b32 {sQinc}, 16384"); a(f"s_mov_b32 {sSinc}, {QS}")
                a(f"s_add_u32 {sSlot}, {sRw}, {1*QS}")
            g.lab(f"L_sw{p}")
            a("s_waitcnt vmcnt(12) lgkmcnt(0)"); g.lg = []
        else:
            a("s_waitcnt vmcnt(0) lgkmcnt(0)"); g.lg = []
        barrier()
        a(f"s_add_u32 {sT}, {sT}, 1")
        if p == 1: a("s_branch L_s_loop0")
    g.lab("L_s_last")
    g.lg = ["mx", "mx"]
    for w_, it in softmax_fillers(SB[1], 1): it()
    g.wl0()
    barrier()
    dump_stamps()
    a("s_endpgm")

    g.lab("L_pv")
    g.lg = []; g.vm = []
    VF = 128; OA = [96, 64]; PF = 32; LS = 22
    vVg, vVw, vVt, vPR, vLR, vOr = "v12", "v13", "v14", "v15", "v16", "v17"
    vOw = [18, 19, 20, 21]
    vL = ["v13", "v14"]
    stamp("v31", 0); rstamp(30)
    a("v_lshlrev_b32 v12, 9, v5"); a("v_lshl_add_u32 v12, v6, 4, v12")
    a(f"s_lshl_b32 {sTmp}, {sW}, 7"); a(f"v_add_u32 v12, {sTmp}, v12")
    a(f"s_mov_b32 {sVs}, 0")
    common_addr()
    a(f"s_add_u32 {sTmp}, {sRw}, {OST}")
    a("v_lshlrev_b32 v13, 4, v2"); a(f"v_add_u32 v13, {sTmp}, v13")
    a("v_bfe_u32 v14, v2, 2, 2"); a("v_lshl_add_u32 v14, v4, 3, v14"); a("v_lshlrev_b32 v14, 7, v14")
    a("v_bfe_u32 v22, v2, 4, 1"); a("v_lshl_add_u32 v14, v22, 5, v14")
    a("v_and_b32 v22, 1, v2"); a("v_lshl_add_u32 v14, v22, 4, v14")
    a("v_bfe_u32 v22, v2, 1, 1"); a("v_lshl_add_u32 v14, v22, 3, v14")
    a(f"v_add_u32 v14, {sTmp}, v14")
    a(f"v_add_u32 {vOr}, {sTmp}, v9")
    a(f"v_add_u32 v{vOw[0]}, {sTmp}, v10")
    for j in range(1, 4): a(f"v_xor_b32 v{vOw[j]}, {32*j}, v{vOw[0]}")
    a("v_mul_u32_u24 v15, 528, v8"); a("v_add_u32 v15, v15, v7"); a("v_lshl_add_u32 v15, v4, 4, v15"); a(f"v_add_u32 v15, {P_OFF}, v15")
    a("v_lshl_add_u32 v16, v8, 5, v7"); a(f"v_add_u32 v16, {LSO}, v16")
    def vload(G_):
        for i in range(4):
            p_ = 4*G_ + i
            g.vmem(f"buffer_load_dwordx4 {vr(VF+4*p_,4)}, {vVg}, {SV}, {sVs} offen {ld}", ("V", G_))
            a(f"s_add_u32 {sVs}, {sVs}, 4096")
    def vbounce(G_):
        base = VF + 16*G_
        g.wv(("V", G_))
        for i in range(4): g.lds(f"ds_write_b128 {vVw}, {vr(base+4*i,4)} offset:{1024*i}", "vw")
        g.wl0()
        for s1 in range(2):
            for blk in range(2):
                for pr in range(2):
                    r = base + (2*s1 + blk)*4 + 2*pr
                    g.lds(f"ds_read_b64_tr_b16 {vr(r,2)}, {vVt} offset:{s1*2048 + pr*512 + 64*blk}", "vr")
    barrier(1)
    for tok in opt.pvpro.split(","):
        if tok[0] == "v": vload(int(tok[1:]))
        elif tok[0] == "g": vbounce(int(tok[1:]))
        elif tok[0] == "q": qdma_const(int(tok[1:]))
        elif tok[0] == "b": barrier(int(tok[1:]))
    g.wl0()
    stamp("v31", 3); rstamp(29)
    if opt.dbg:
        a("s_memrealtime s[76:77]"); a("s_waitcnt lgkmcnt(0)")
    a(f"s_mov_b32 {sT}, 1")
    a(f"s_mov_b32 {sQsoff}, {7*16384}")
    a(f"s_add_u32 {sSlot}, {sRw}, {1*QS}")
    a(f"s_mov_b32 {sOsoff}, 0x40000000")
    a(f"s_add_u32 {sWrap}, {sRw}, {NQ*QS}")
    if opt.prio_pv: a(f"s_setprio {opt.prio_pv}")
    def epi_fillers(prv, L):
        F = []
        for j in range(4):
            b = prv + 8*j
            for i in range(8): F.append((1, I(f"v_mul_f32 v{b+i}, {L}, v{b+i}")))
            for n in range(4): F.append((1, I(f"v_cvt_pk_bf16_f32 v{b+n}, v{b+2*n}, v{b+2*n+1}")))
            F.append((1, (lambda b=b, j=j: g.lds(f"ds_write_b128 v{vOw[j]}, {vr(b,4)}", "ow"))))
        R = []
        for tp in range(4):
            def rd(tp=tp):
                if tp == 0 and opt.owait: g.wl("ow")
                g.lds(f"ds_read_b128 {vr(prv+8*tp+4,4)}, {vOr} offset:{1024*tp}", ("or", tp))
            R.append((1, rd))
        S = []
        for tp in range(4):
            def sto(tp=tp):
                g.wl(("or", tp))
                a(f"buffer_store_dwordx4 {vr(prv+8*tp+4,4)}, {vVg}, {SO}, {sOsoff} offen {st}")
                a(f"s_add_u32 {sOsoff}, {sOsoff}, 4096")
            S.append((opt.wvm, sto))
        return F, R, S
    for pc in range(2):
        cur = OA[pc]; prv = OA[pc ^ 1]
        po = QS * pc
        g.lab(f"L_pv_loop{pc}")
        g.lg = []; g.vm = []
        if pc == 0:
            a(f"s_cmp_eq_u32 {sT}, 17"); a("s_cbranch_scc1 L_pv_last")
        for s in range(4): g.lds(f"ds_read_b128 {vr(PF+4*s,4)}, {vPR} offset:{po + 32*s}", ("p", s))
        g.lds(f"ds_read_b128 {vr(LS,4)}, {vLR} offset:{256*pc}", "ls")
        g.lds(f"ds_read_b128 {vr(LS+4,4)}, {vLR} offset:{256*pc+16}", "ls")
        slots = [lambda: None]
        for s in range(16):
            for blk in range(2):
                def f(s=s, blk=blk):
                    if blk == 0: g.wl(("p", s))
                    A = vr(cur + 16*blk, 16)
                    a(f"v_mfma_f32_32x32x16_bf16 {A}, {vr(VF + (2*s+blk)*4, 4)}, {vr(PF + 4*(s % 8), 4)}, {'0' if s == 0 else A}")
                    if blk == 1 and s + 4 < 16:
                        g.lds(f"ds_read_b128 {vr(PF + 4*((s+4) % 8), 4)}, {vPR} offset:{po + 32*(s+4)}", ("p", s+4))
                slots.append(f)
        E, R, S = epi_fillers(prv, vL[pc ^ 1])
        Dm = [(opt.wvm, (lambda i=i: qdma1(sQsoff, sSlot, i, "qn"))) for i in range(4)]
        if opt.sdma >= 0: Dm = []
        def lsf():
            g.wl("ls")
            a(f"v_add_f32 v{LS}, v{LS}, v{LS+1}")
        Lf = [(1, lsf), (1, I(f"v_add_f32 v{LS+2}, v{LS+2}, v{LS+3}")),
              (1, I(f"v_add_f32 v{LS+4}, v{LS+4}, v{LS+5}")), (1, I(f"v_add_f32 v{LS+6}, v{LS+6}, v{LS+7}")),
              (1, I(f"v_add_f32 v{LS}, v{LS}, v{LS+2}")), (1, I(f"v_add_f32 v{LS+4}, v{LS+4}, v{LS+6}")),
              (1, I(f"v_add_f32 v{LS}, v{LS}, v{LS+4}"))]
        def book():
            a(f"v_rcp_f32 {vL[pc]}, v{LS}")
            if opt.sdma < 0:
                a(f"s_add_u32 {sQsoff}, {sQsoff}, 16384")
                a(f"s_add_u32 {sSlot}, {sSlot}, {QS}")
                a(f"s_cmp_eq_u32 {sSlot}, {sWrap}")
                a(f"s_cselect_b32 {sSlot}, {sRw}, {sSlot}")
            if pc == 0:
                a(f"s_cmp_eq_u32 {sT}, 1")
                a(f"s_cselect_b32 {sOsoff}, 0, {sOsoff}")
        if opt.pvord == 0:
            F = E + Dm[:2] + R + Lf + S + Dm[2:] + [(2, book)]
            after = (0, 2)
        elif opt.pvord == 1:
            F = Dm + E + R + Lf + S + [(2, book)]
        else:
            F = E + R + Lf + S + Dm + [(2, book)]
        seq = merge(slots, F, opt.pv_f0, opt.pv_f1)
        for it in seq: it()
        g.wl0()
        fst(7)
        if pc == 1:
            a(f"s_cmp_eq_u32 {sT}, 16"); a(f"s_cbranch_scc1 L_pv_nb{pc}")
        seqv = [("Q", 4)]*4 + [("Q", 5)]*4 + [("Q", 6)]*4
        need = {}
        for t in range(1, 9):
            if opt.pvord == 0: ph = [("Q", t+6)]*2 + [("O", t)]*4 + [("Q", t+6)]*2
            elif opt.pvord == 1: ph = [("Q", t+6)]*4 + [("O", t)]*4
            else: ph = [("O", t)]*4 + [("Q", t+6)]*4
            seqv += ph
            idx = max(i for i, x in enumerate(seqv) if x == ("Q", t+3))
            need[t] = len(seqv) - 1 - idx
        steady = need[8]
        if opt.sdma >= 0:
            steady = 12; need = {t: 12 for t in need}
        ts = [t for t in range(1, 8) if (t % 2 == 1) == (pc == 0) and need[t] != steady]
        if ts:
            a(f"s_cmp_gt_u32 {sT}, {ts[-1]}"); a(f"s_cbranch_scc1 L_wS_{pc}")
            for t in reversed(ts[1:]):
                a(f"s_cmp_eq_u32 {sT}, {t}"); a(f"s_cbranch_scc1 L_w{t}_{pc}")
            for k, t in enumerate(ts):
                if k: g.lab(f"L_w{t}_{pc}")
                a(f"s_waitcnt vmcnt({need[t]})")
            g.lab(f"L_wS_{pc}")
        a(f"s_waitcnt vmcnt({steady})")
        barrier()
        if pc == 1: g.lab(f"L_pv_nb{pc}")
        a(f"s_add_u32 {sT}, {sT}, 1")
        if pc == 1: a("s_branch L_pv_loop0")
    g.lab("L_pv_last")
    g.lg = []
    a("s_nop 7")
    E, R, S = epi_fillers(OA[1], vL[1])
    for w_, it in E + R + S: it()
    if opt.stamp: a("s_waitcnt vmcnt(0)")
    dump_stamps()
    if opt.dbg:
        a("s_waitcnt vmcnt(0)")
        a("s_memrealtime s[68:69]"); a("s_memtime s[70:71]"); a("s_waitcnt lgkmcnt(0)")
        a("s_mov_b32 s72, s62"); a("s_mov_b32 s73, s63"); a("s_mov_b32 s74, 256"); a("s_mov_b32 s75, 0x20000")
        a("s_not_b32 s64, s64"); a("s_sub_u32 s70, s70, s66")
        a("v_mov_b32 v3, 0"); a("v_mov_b32 v4, s64"); a("v_mov_b32 v5, s68"); a("v_mov_b32 v6, s70"); a("v_mov_b32 v7, s76")
        a("s_mov_b64 exec, 1")
        a("buffer_atomic_umax v4, v3, s[72:75], 0 offen offset:0")
        a("buffer_atomic_umax v5, v3, s[72:75], 0 offen offset:4")
        a("buffer_atomic_umax v6, v3, s[72:75], 0 offen offset:8")
        a("buffer_atomic_umax v7, v3, s[72:75], 0 offen offset:12")
    g.lab("L_end")
    a("s_endpgm")
    if opt.abl:
        ab = opt.abl.split(",")
        out = []; inloop = False; role = None
        for ln in g.o:
            t = ln.strip()
            if t.startswith("L_s_loop0:"): inloop = True; role = "s"
            if t.startswith("L_pv:"): inloop = False
            if t.startswith("L_pv_loop0:"): inloop = True; role = "pv"
            drop = False
            if inloop:
                if "smx" in ab and role == "s" and t.split()[0] in ("v_fma_f32", "v_exp_f32", "v_add_f32", "v_cvt_pk_bf16_f32", "v_max3_f32", "v_max_f32"): drop = True
                if "exp" in ab and role == "s" and t.startswith("v_exp_f32"): drop = True
                if "qrd" in ab and role == "s" and t.startswith("ds_read_b128") and ", v24 " in t: drop = True
                if "prd" in ab and role == "pv" and t.startswith("ds_read_b128") and ", v15 " in t: drop = True
                if "pw" in ab and role == "s" and t.startswith("ds_write_b128"): drop = True
                if "epi" in ab and role == "pv" and (t.split()[0] in ("v_mul_f32", "v_cvt_pk_bf16_f32", "ds_write_b128") or (t.startswith("ds_read_b128") and ", v17 " in t)): drop = True
                if "st" in ab and t.startswith("buffer_store_dwordx4"): drop = True
                if "dma" in ab and t.startswith("buffer_load_dwordx4") and t.endswith("lds"): drop = True
                if "mfs" in ab and role == "s" and t.startswith("v_mfma"): drop = True
                if "mfp" in ab and role == "pv" and t.startswith("v_mfma"): drop = True
            if drop: continue
            if inloop and t.startswith("s_waitcnt lgkmcnt(") and any(x in ab for x in ("qrd", "prd", "pw", "epi")) and "lgkmcnt(0)" not in t:
                ln = "    s_waitcnt lgkmcnt(4)"
            out.append(ln)
        g.o = out
    return HEADER + "\n".join(g.o) + FOOTER

def parser():
    ap = argparse.ArgumentParser()
    ap.add_argument("-o", default="k3.s")
    ap.add_argument("--ld", default="nt"); ap.add_argument("--st", default="nt")
    ap.add_argument("--stamp", type=int, default=0)
    ap.add_argument("--prio_s", type=int, default=0); ap.add_argument("--prio_pv", type=int, default=0)
    ap.add_argument("--skew", type=int, default=0)
    ap.add_argument("--klag", type=int, default=3)
    ap.add_argument("--s_f0", type=int, default=1); ap.add_argument("--s_f1", type=int, default=31)
    ap.add_argument("--pv_f0", type=int, default=0); ap.add_argument("--pv_f1", type=int, default=24)
    ap.add_argument("--wvm", type=float, default=6)
    ap.add_argument("--pvord", type=int, default=0)
    ap.add_argument("--owait", type=int, default=1)
    ap.add_argument("--abl", default=""); ap.add_argument("--dbg", type=int, default=0)
    ap.add_argument("--sdma", type=int, default=-1); ap.add_argument("--sdma_step", type=int, default=4)
    ap.add_argument("--pvpro", default="v0,v1,v2,v3,b2,g0,v4,g1,v5,b5,g2,v6,g3,v7,b6,g4,q4,g5,q5,g6,q6,g7")
    return ap
if __name__ == "__main__":
    opt = parser().parse_args()
    open(opt.o, "w").write(gen(opt))
```

```python
import sys, argparse
from gen1 import HEADER, FOOTER, G, vr, RS, QS, P_OFF, OST, MAXO, LSO, NQ

sW = "s3"
SQ, SK, SV, SO = "s[16:19]", "s[20:23]", "s[24:27]", "s[28:31]"
sT = "s33"; sQoff = "s34"; sC = "s38"
sRw = "s39"; sTmp = "s40"; sWrap = "s41"
sK0 = 44
sQsoff = "s48"; sOsoff = "s49"; sSlot = "s50"; sVs = "s51"
sStamp = 52
sQinc = "s42"; sSinc = "s43"; sQc = "s54"
SD = "s[56:59]"

def merge(slots, fillers, start, end):
    tot = sum(w for w, _ in fillers)
    n = end - start
    out = []; fi = 0; acc = 0.0
    for i, sl in enumerate(slots):
        out.append(sl)
        if start <= i < end:
            target = tot * (i - start + 1) / n
            while fi < len(fillers) and acc + fillers[fi][0] * 0.5 <= target:
                acc += fillers[fi][0]; out.append(fillers[fi][1]); fi += 1
    while fi < len(fillers): out.append(fillers[fi][1]); fi += 1
    return out

def gen(opt):
    g = G(opt); a = g
    ld = opt.ld; st = opt.st
    a("s_cmp_ge_u32 s2, 256"); a("s_cbranch_scc1 L_end")
    a("s_load_dwordx4 s[4:7], s[0:1], 0")
    a("s_load_dwordx4 s[8:11], s[0:1], 16")
    if opt.stamp: a("s_load_dwordx2 s[12:13], s[0:1], 40")
    if opt.dbg:
        a("s_load_dwordx2 s[62:63], s[0:1], 32")
        a("s_memrealtime s[64:65]"); a("s_memtime s[66:67]")
    a("v_lshrrev_b32 v1, 6, v0")
    a("v_and_b32 v2, 63, v0")
    a("v_readfirstlane_b32 s32, v1")
    a("v_and_b32 v3, 31, v2")
    a("v_lshrrev_b32 v4, 5, v2")
    a("v_lshrrev_b32 v5, 3, v2")
    a("v_and_b32 v6, 7, v2")
    a("v_lshrrev_b32 v7, 3, v3")
    a(f"v_mul_u32_u24 v7, {RS}, v7")
    a("v_and_b32 v8, 7, v3")
    a(f"s_and_b32 {sW}, s32, 3")
    a(f"s_mul_i32 {sRw}, {sW}, {RS}")
    a("s_lshl_b32 s14, s2, 18"); a("s_lshl_b32 s15, s2, 17")
    a("v_xor_b32 v11, v3, v4"); a("v_lshlrev_b32 v11, 4, v11"); a("v_lshl_add_u32 v11, v4, 9, v11")
    a(f"s_lshl_b32 {sTmp}, {sW}, 12"); a(f"v_add_u32 v11, {sTmp}, v11")
    a("s_waitcnt lgkmcnt(0)")
    a("s_add_u32 s16, s4, s14"); a("s_addc_u32 s17, s5, 0"); a("s_mov_b32 s18, 262144"); a("s_mov_b32 s19, 0x20000")
    a("s_add_u32 s20, s6, s15"); a("s_addc_u32 s21, s7, 0"); a("s_mov_b32 s22, 131072"); a("s_mov_b32 s23, 0x20000")
    a("s_add_u32 s24, s8, s15"); a("s_addc_u32 s25, s9, 0"); a("s_mov_b32 s26, 131072"); a("s_mov_b32 s27, 0x20000")
    a("s_add_u32 s28, s10, s14"); a("s_addc_u32 s29, s11, 0"); a("s_mov_b32 s30, 262144"); a("s_mov_b32 s31, 0x20000")
    if opt.stamp:
        a("s_mov_b32 s56, s12"); a("s_mov_b32 s57, s13"); a("s_mov_b32 s58, 0x1000000"); a("s_mov_b32 s59, 0x20000")
        a("v_mov_b32 v30, 0"); a("v_mov_b32 v31, 0")
    vQg = "v11"
    def qdma1(tile_soff, slot_expr, i, tag):
        if isinstance(slot_expr, int): a(f"s_add_u32 m0, {sRw}, {slot_expr*QS + 32*i}")
        else: a(f"s_add_u32 m0, {slot_expr}, {32*i}")
        a("s_nop 0")
        g.vmem(f"buffer_load_dwordx4 {vQg}, {SQ}, {tile_soff} offen offset:{1024*i} {ld} lds", tag)
    def qdma_const(t):
        a(f"s_mov_b32 {sQc}, {t*16384}")
        for i in range(4): qdma1(sQc, t % NQ, i, ("Q", t))
    def common_addr():
        a("v_xor_b32 v9, v6, v5"); a("v_lshlrev_b32 v9, 4, v9"); a("v_lshl_add_u32 v9, v5, 7, v9")
        a("v_xor_b32 v10, v4, v8"); a("v_lshlrev_b32 v10, 4, v10"); a("v_lshl_add_u32 v10, v3, 7, v10")
    a("s_cmp_ge_u32 s32, 4"); a("s_cbranch_scc1 L_pv")

    def stamp(vreg, idx=None):
        if not opt.stamp: return
        a(f"s_memtime s[{sStamp}:{sStamp+1}]")
        a("s_waitcnt lgkmcnt(0)"); g.lg = []
        if isinstance(idx, int): a(f"s_mov_b32 m0, {idx}")
        else: a(f"s_add_u32 m0, {sT}, 6")
        a("s_nop 1")
        a(f"v_writelane_b32 {vreg}, s{sStamp}, m0")
    def rstamp(idx):
        if not opt.stamp: return
        a(f"s_memrealtime s[{sStamp}:{sStamp+1}]")
        a("s_waitcnt lgkmcnt(0)"); g.lg = []
        a(f"s_mov_b32 m0, {idx}")
        a("s_nop 1")
        a(f"v_writelane_b32 v30, s{sStamp}, m0")
    def fst(r):
        if opt.stamp < 2: return
        sv = list(g.lg)
        stamp(f"v{r}")
        g.lg = sv
    def barrier(idx=None):
        stamp("v30", idx)
        a("s_barrier")
        stamp("v31", idx)
    def dump_stamps():
        if not opt.stamp: return
        stamp("v30", 26); rstamp(31)
        a("s_lshl_b32 s60, s2, 12"); a("s_lshl_b32 s61, s32, 9"); a("s_add_u32 s60, s60, s61")
        a("v_lshlrev_b32 v1, 2, v2")
        a(f"buffer_store_dword v30, v1, {SD}, s60 offen")
        a(f"buffer_store_dword v31, v1, {SD}, s60 offen offset:256")
        if opt.stamp >= 2:
            a("s_lshl_b32 s60, s2, 14"); a("s_lshl_b32 s61, s32, 11"); a("s_add_u32 s60, s60, s61"); a("s_add_u32 s60, s60, 0x100000")
            for r in range(3, 9): a(f"buffer_store_dword v{r}, v1, {SD}, s60 offen offset:{256*(r-3)}")
    I = lambda t: (lambda: a(t))

    KF = 128; SB = [96, 64]; QF = 32; MX = 16
    vQb, vPW, vStR, vStW, vQ = "v12", "v13", "v14", "v15", "v24"
    vKg, vKw = "v16", "v17"; vKr = [18, 19, 20, 21]
    vM, vS0, vS1, vX0, vX1 = "v25", "v26", "v27", "v28", "v29"
    g.c("S wave")
    stamp("v31", 0); rstamp(30)
    qdma_const(0)
    a("v_lshrrev_b32 v16, 2, v5"); a("v_lshlrev_b32 v16, 3, v16"); a("v_and_b32 v17, 3, v5"); a("v_add_u32 v16, v16, v17")
    a("v_lshlrev_b32 v16, 9, v16"); a("v_lshl_add_u32 v16, v6, 4, v16")
    a(f"s_lshl_b32 s{sK0}, {sW}, 15")
    a(f"s_add_u32 s{sK0+1}, s{sK0}, 8192"); a(f"s_add_u32 s{sK0+2}, s{sK0}, 16384"); a(f"s_add_u32 s{sK0+3}, s{sK0}, 24576")
    common_addr()
    a(f"s_add_u32 {sTmp}, {sRw}, {P_OFF}")
    a(f"v_add_u32 {vKw}, {sTmp}, v9")
    a(f"v_add_u32 v{vKr[0]}, {sTmp}, v10")
    for j in range(1, 4): a(f"v_xor_b32 v{vKr[j]}, {32*j}, v{vKr[0]}")
    def kbounce(gidx):
        kb, cg = gidx // 4, gidx % 4
        base = KF + kb*64 + cg*16
        g.wv(("K", kb, cg))
        for i in range(4): g.lds(f"ds_write_b128 {vKw}, {vr(base+4*i,4)} offset:{1024*i}", "kw")
        g.wl0()
        for j in range(4): g.lds(f"ds_read_b128 {vr(base+4*j,4)}, v{vKr[j]}", "kr")
    nb = 0
    for gidx in range(8):
        kb, cg = gidx // 4, gidx % 4
        for i in range(4):
            r = KF + kb*64 + cg*16 + 4*i
            g.vmem(f"buffer_load_dwordx4 {vr(r,4)}, {vKg}, {SK}, s{sK0 + kb*2 + (i>>1)} offen offset:{(i&1)*2048 + 128*cg} {ld}", ("K", kb, cg))
        if gidx >= opt.klag: kbounce(nb); nb += 1
    barrier(1)
    qdma_const(1); qdma_const(2)
    a("v_lshrrev_b32 v12, 1, v8"); a("v_mul_u32_u24 v12, 1056, v12"); a("v_add_u32 v12, v12, v7")
    a("v_and_b32 v13, 1, v3"); a("v_lshl_add_u32 v12, v13, 9, v12"); a("v_xor_b32 v13, v13, v4"); a("v_lshl_add_u32 v12, v13, 4, v12")
    a("v_mul_u32_u24 v13, 528, v8"); a("v_add_u32 v13, v13, v7"); a("v_lshl_add_u32 v13, v4, 4, v13")
    a(f"s_lshl_b32 {sTmp}, {sW}, 7"); a(f"s_add_u32 {sTmp}, {sTmp}, {P_OFF}"); a(f"v_add_u32 v13, {sTmp}, v13")
    a("v_lshl_add_u32 v14, v8, 5, v7"); a(f"v_add_u32 v14, {MAXO}, v14")
    a(f"s_lshl_b32 {sTmp}, {sW}, 3"); a("v_lshl_add_u32 v15, v4, 2, v14"); a(f"v_add_u32 v15, {sTmp}, v15")
    a(f"s_mov_b32 {sC}, 0x3db8aa3b")
    a(f"s_mov_b32 {sQoff}, 0")
    a(f"v_mov_b32 {vQ}, {vQb}")
    while nb < 8: kbounce(nb); nb += 1
    g.wv(("Q", 1))
    g.wl0()
    barrier(2)
    if opt.prio_s: a(f"s_setprio {opt.prio_s}")
    for s in range(4): g.lds(f"ds_read_b128 {vr(QF+4*s,4)}, {vQ} offset:{32*s}", ("q", s))
    g.wl0()
    a(f"s_mov_b32 {sT}, -1")
    if opt.sdma >= 0:
        a(f"s_mov_b32 {sQinc}, 0"); a(f"s_mov_b32 {sSinc}, 0")
        a(f"s_mov_b32 {sQsoff}, 0x40000000"); a(f"s_add_u32 {sSlot}, {sRw}, {5*QS}")
        a(f"s_add_u32 {sWrap}, {sRw}, {NQ*QS}")
    a("s_branch L_s_loop1")

    def max_half(Y, kb, acc):
        b = Y + 16*kb
        ops = [f"v_max3_f32 {acc}, v{b}, v{b+1}, v{b+2}"]
        ops += [f"v_max3_f32 {acc}, {acc}, v{b+i}, v{b+i+1}" for i in range(3, 15, 2)]
        ops += [f"v_max_f32 {acc}, {acc}, v{b+15}"]
        return ops
    def softmax_fillers(X, p):
        F = []
        def head():
            g.wl("mx")
            a(f"v_max3_f32 {vM}, v{MX}, v{MX+1}, v{MX+2}")
        F.append((1, head))
        F.append((1, I(f"v_max3_f32 v{MX+3}, v{MX+3}, v{MX+4}, v{MX+5}")))
        F.append((1, I(f"v_max3_f32 {vM}, {vM}, v{MX+6}, v{MX+7}")))
        F.append((1, I(f"v_max_f32 {vM}, {vM}, v{MX+3}")))
        F.append((1, I(f"v_mul_f32 {vM}, {sC}, {vM}")))
        N = 32
        for i in range(N + 6):
            if i < N: F.append((1, I(f"v_fma_f32 v{X+i}, v{X+i}, {sC}, -{vM}")))
            j = i - 2
            if 0 <= j < N: F.append((2, I(f"v_exp_f32 v{X+j}, v{X+j}")))
            k = i - 4
            if 0 <= k < N:
                acc = vS0 if k % 2 == 0 else vS1
                if k < 2: F.append((1, I(f"v_mov_b32 {acc}, v{X+k}")))
                else: F.append((1, I(f"v_add_f32 {acc}, {acc}, v{X+k}")))
            c = i - 5
            if 0 <= c < N and c % 2 == 1:
                gi = c // 8; n = (c % 8) // 2; b = X + 8*gi
                F.append((1, I(f"v_cvt_pk_bf16_f32 v{b+n}, v{b+2*n}, v{b+2*n+1}")))
                if n == 3:
                    F.append((1, (lambda b=b, gi=gi: g.lds(f"ds_write_b128 {vPW}, {vr(b,4)} offset:{QS*p + 32*gi}", "pw"))))
        F.append((1, I(f"v_add_f32 {vS0}, {vS0}, {vS1}")))
        F.append((1, lambda: g.lds(f"ds_write_b32 {vStW}, {vS0} offset:{512 + 256*p}", "lw")))
        return F

    D = opt.skew
    for p in range(2):
        X = SB[p]; Y = SB[p ^ 1]
        g.lab(f"L_s_loop{p}")
        g.lg = []
        g.lds(f"ds_read_b128 {vr(MX,4)}, {vStR} offset:{256*p}", "mx")
        g.lds(f"ds_read_b128 {vr(MX+4,4)}, {vStR} offset:{256*p+16}", "mx")
        if p == 0:
            a(f"s_cmp_lg_u32 {sT}, 0"); a("s_cbranch_scc1 L_s_noq3")
            qdma_const(3)
            g.lab("L_s_noq3")
        else:
            a(f"s_cmp_eq_u32 {sT}, 15"); a("s_cbranch_scc1 L_s_last")
        slots = []
        def mk(kb, s, rd):
            def f():
                if s >= 4: g.wl(("q", s))
                acc = vr(Y + 16*kb, 16)
                a(f"v_mfma_f32_32x32x16_bf16 {acc}, {vr(KF + kb*64 + s*4, 4)}, {vr(QF + 4*(s % 8), 4)}, {'0' if s == 0 else acc}")
                if rd is not None:
                    if rd == 16:
                        a(f"s_add_u32 {sQoff}, {sQoff}, {QS}")
                        a(f"s_cmp_eq_u32 {sQoff}, {QS*NQ}")
                        a(f"s_cselect_b32 {sQoff}, 0, {sQoff}")
                        a(f"v_add_u32 {vQ}, {sQoff}, {vQb}")
                    g.lds(f"ds_read_b128 {vr(QF + 4*(rd % 8), 4)}, {vQ} offset:{32*(rd % 16)}", ("q", rd))
            return f
        order = []
        for s in range(16 + D):
            if s < 16: order.append((0, s))
            if 0 <= s - D < 16: order.append((1, s - D))
        rds = {}
        for f in range(4, 20):
            pos = order.index((0, f - 4))
            if (1, f - 4 - D) in order and order.index((1, f - 4 - D)) == pos + 1: pos += 1
            if f - 8 >= 0: pos = max(pos, order.index((1, f - 8)))
            while pos in rds: pos += 1
            rds[pos] = f
        for i, (kb, s) in enumerate(order): slots.append(mk(kb, s, rds.get(i)))
        F = softmax_fillers(X, p)
        def sdma(i):
            def f():
                if i == 0:
                    pass
                qdma1(sQsoff, sSlot, i, "qn")
                if i == 3:
                    a(f"s_add_u32 {sQsoff}, {sQsoff}, {sQinc}")
                    a(f"s_add_u32 {sSlot}, {sSlot}, {sSinc}")
                    a(f"s_cmp_eq_u32 {sSlot}, {sWrap}")
                    a(f"s_cselect_b32 {sSlot}, {sRw}, {sSlot}")
            return f
        if opt.sdma >= 0 and opt.sdma < 32:
            for i in range(4):
                k = min(31, opt.sdma + i*opt.sdma_step)
                old = slots[k]
                slots[k] = (lambda old=old, i=i: (old(), sdma(i)()))
        seq = merge(slots, F, opt.s_f0, opt.s_f1)
        for it in seq: it()
        fst(3)
        m0 = max_half(Y, 0, vX0); m1 = max_half(Y, 1, vX1)
        if opt.sdma == 32:
            for i in range(4): sdma(i)()
        else: a(f"s_nop {10 - D}")
        for op in m0: a(op)
        a("s_nop 2")
        for op in m1: a(op)
        a(f"v_max_f32 {vX0}, {vX0}, {vX1}")
        g.lds(f"ds_write_b32 {vStW}, {vX0} offset:{256*(p^1)}", "mw")
        if opt.sdma == 33:
            for i in range(4): sdma(i)()
        if opt.sdma >= 0:
            a(f"s_cmp_eq_u32 {sT}, {0 if p == 0 else -1}"); a(f"s_cbranch_scc0 L_sw{p}")
            a("s_waitcnt vmcnt(0)")
            if p == 0:
                a(f"s_mov_b32 {sQsoff}, {7*16384}"); a(f"s_mov_b32 {sQinc}, 16384"); a(f"s_mov_b32 {sSinc}, {QS}")
                a(f"s_add_u32 {sSlot}, {sRw}, {1*QS}")
            g.lab(f"L_sw{p}")
            a("s_waitcnt vmcnt(12) lgkmcnt(0)"); g.lg = []
        else:
            a("s_waitcnt vmcnt(0) lgkmcnt(0)"); g.lg = []
        barrier()
        a(f"s_add_u32 {sT}, {sT}, 1")
        if p == 1: a("s_branch L_s_loop0")
    g.lab("L_s_last")
    g.lg = ["mx", "mx"]
    for w_, it in softmax_fillers(SB[1], 1): it()
    g.wl0()
    barrier()
    dump_stamps()
    a("s_endpgm")

    g.lab("L_pv")
    g.lg = []; g.vm = []
    VF = 128; OA = [96, 64]; PF = 32; LS = 22
    vVg, vVw, vVt, vPR, vLR, vOr = "v12", "v13", "v14", "v15", "v16", "v17"
    vOw = [18, 19, 20, 21]
    vL = ["v13", "v14"]
    stamp("v31", 0); rstamp(30)
    a("v_lshlrev_b32 v12, 9, v5"); a("v_lshl_add_u32 v12, v6, 4, v12")
    a(f"s_lshl_b32 {sTmp}, {sW}, 7"); a(f"v_add_u32 v12, {sTmp}, v12")
    a(f"s_mov_b32 {sVs}, 0")
    common_addr()
    a(f"s_add_u32 {sTmp}, {sRw}, {OST}")
    a("v_lshlrev_b32 v13, 4, v2"); a(f"v_add_u32 v13, {sTmp}, v13")
    a("v_bfe_u32 v14, v2, 2, 2"); a("v_lshl_add_u32 v14, v4, 3, v14"); a("v_lshlrev_b32 v14, 7, v14")
    a("v_bfe_u32 v22, v2, 4, 1"); a("v_lshl_add_u32 v14, v22, 5, v14")
    a("v_and_b32 v22, 1, v2"); a("v_lshl_add_u32 v14, v22, 4, v14")
    a("v_bfe_u32 v22, v2, 1, 1"); a("v_lshl_add_u32 v14, v22, 3, v14")
    a(f"v_add_u32 v14, {sTmp}, v14")
    a(f"v_add_u32 {vOr}, {sTmp}, v9")
    a(f"v_add_u32 v{vOw[0]}, {sTmp}, v10")
    for j in range(1, 4): a(f"v_xor_b32 v{vOw[j]}, {32*j}, v{vOw[0]}")
    a("v_mul_u32_u24 v15, 528, v8"); a("v_add_u32 v15, v15, v7"); a("v_lshl_add_u32 v15, v4, 4, v15"); a(f"v_add_u32 v15, {P_OFF}, v15")
    a("v_lshl_add_u32 v16, v8, 5, v7"); a(f"v_add_u32 v16, {LSO}, v16")
    def vload(G_):
        for i in range(4):
            p_ = 4*G_ + i
            g.vmem(f"buffer_load_dwordx4 {vr(VF+4*p_,4)}, {vVg}, {SV}, {sVs} offen {ld}", ("V", G_))
            a(f"s_add_u32 {sVs}, {sVs}, 4096")
    def vbounce(G_):
        base = VF + 16*G_
        g.wv(("V", G_))
        for i in range(4): g.lds(f"ds_write_b128 {vVw}, {vr(base+4*i,4)} offset:{1024*i}", "vw")
        g.wl0()
        for s1 in range(2):
            for blk in range(2):
                for pr in range(2):
                    r = base + (2*s1 + blk)*4 + 2*pr
                    g.lds(f"ds_read_b64_tr_b16 {vr(r,2)}, {vVt} offset:{s1*2048 + pr*512 + 64*blk}", "vr")
    barrier(1)
    for tok in opt.pvpro.split(","):
        if tok[0] == "v": vload(int(tok[1:]))
        elif tok[0] == "g": vbounce(int(tok[1:]))
        elif tok[0] == "q": qdma_const(int(tok[1:]))
        elif tok[0] == "b": barrier(int(tok[1:]))
    g.wl0()
    stamp("v31", 3); rstamp(29)
    if opt.dbg:
        a("s_memrealtime s[76:77]"); a("s_waitcnt lgkmcnt(0)")
    a(f"s_mov_b32 {sT}, 1")
    a(f"s_mov_b32 {sQsoff}, {7*16384}")
    a(f"s_add_u32 {sSlot}, {sRw}, {1*QS}")
    a(f"s_mov_b32 {sOsoff}, 0x40000000")
    a(f"s_add_u32 {sWrap}, {sRw}, {NQ*QS}")
    if opt.prio_pv: a(f"s_setprio {opt.prio_pv}")
    def epi_fillers(prv, L):
        F = []
        for j in range(4):
            b = prv + 8*j
            for i in range(8): F.append((1, I(f"v_mul_f32 v{b+i}, {L}, v{b+i}")))
            for n in range(4): F.append((1, I(f"v_cvt_pk_bf16_f32 v{b+n}, v{b+2*n}, v{b+2*n+1}")))
            F.append((1, (lambda b=b, j=j: g.lds(f"ds_write_b128 v{vOw[j]}, {vr(b,4)}", "ow"))))
        R = []
        for tp in range(4):
            def rd(tp=tp):
                if tp == 0 and opt.owait: g.wl("ow")
                g.lds(f"ds_read_b128 {vr(prv+8*tp+4,4)}, {vOr} offset:{1024*tp}", ("or", tp))
            R.append((1, rd))
        S = []
        for tp in range(4):
            def sto(tp=tp):
                g.wl(("or", tp))
                a(f"buffer_store_dwordx4 {vr(prv+8*tp+4,4)}, {vVg}, {SO}, {sOsoff} offen {st}")
                a(f"s_add_u32 {sOsoff}, {sOsoff}, 4096")
            S.append((opt.wvm, sto))
        return F, R, S
    for pc in range(2):
        cur = OA[pc]; prv = OA[pc ^ 1]
        po = QS * pc
        g.lab(f"L_pv_loop{pc}")
        g.lg = []; g.vm = []
        if pc == 0:
            a(f"s_cmp_eq_u32 {sT}, 17"); a("s_cbranch_scc1 L_pv_last")
        for s in range(4): g.lds(f"ds_read_b128 {vr(PF+4*s,4)}, {vPR} offset:{po + 32*s}", ("p", s))
        g.lds(f"ds_read_b128 {vr(LS,4)}, {vLR} offset:{256*pc}", "ls")
        g.lds(f"ds_read_b128 {vr(LS+4,4)}, {vLR} offset:{256*pc+16}", "ls")
        slots = [lambda: None]
        for s in range(16):
            for blk in range(2):
                def f(s=s, blk=blk):
                    if blk == 0: g.wl(("p", s))
                    A = vr(cur + 16*blk, 16)
                    a(f"v_mfma_f32_32x32x16_bf16 {A}, {vr(VF + (2*s+blk)*4, 4)}, {vr(PF + 4*(s % 8), 4)}, {'0' if s == 0 else A}")
                    if blk == 1 and s + 4 < 16:
                        g.lds(f"ds_read_b128 {vr(PF + 4*((s+4) % 8), 4)}, {vPR} offset:{po + 32*(s+4)}", ("p", s+4))
                slots.append(f)
        E, R, S = epi_fillers(prv, vL[pc ^ 1])
        Dm = [(opt.wvm, (lambda i=i: qdma1(sQsoff, sSlot, i, "qn"))) for i in range(4)]
        if opt.sdma >= 0: Dm = []
        def lsf():
            g.wl("ls")
            a(f"v_add_f32 v{LS}, v{LS}, v{LS+1}")
        Lf = [(1, lsf), (1, I(f"v_add_f32 v{LS+2}, v{LS+2}, v{LS+3}")),
              (1, I(f"v_add_f32 v{LS+4}, v{LS+4}, v{LS+5}")), (1, I(f"v_add_f32 v{LS+6}, v{LS+6}, v{LS+7}")),
              (1, I(f"v_add_f32 v{LS}, v{LS}, v{LS+2}")), (1, I(f"v_add_f32 v{LS+4}, v{LS+4}, v{LS+6}")),
              (1, I(f"v_add_f32 v{LS}, v{LS}, v{LS+4}"))]
        def book():
            a(f"v_rcp_f32 {vL[pc]}, v{LS}")
            if opt.sdma < 0:
                a(f"s_add_u32 {sQsoff}, {sQsoff}, 16384")
                a(f"s_add_u32 {sSlot}, {sSlot}, {QS}")
                a(f"s_cmp_eq_u32 {sSlot}, {sWrap}")
                a(f"s_cselect_b32 {sSlot}, {sRw}, {sSlot}")
            if pc == 0:
                a(f"s_cmp_eq_u32 {sT}, 1")
                a(f"s_cselect_b32 {sOsoff}, 0, {sOsoff}")
        if opt.pvord == 0:
            F = E + Dm[:2] + R + Lf + S + Dm[2:] + [(2, book)]
            after = (0, 2)
        elif opt.pvord == 1:
            F = Dm + E + R + Lf + S + [(2, book)]
        else:
            F = E + R + Lf + S + Dm + [(2, book)]
        seq = merge(slots, F, opt.pv_f0, opt.pv_f1)
        for it in seq: it()
        g.wl0()
        fst(7)
        if pc == 1:
            a(f"s_cmp_eq_u32 {sT}, 16"); a(f"s_cbranch_scc1 L_pv_nb{pc}")
        seqv = [("Q", 4)]*4 + [("Q", 5)]*4 + [("Q", 6)]*4
        need = {}
        for t in range(1, 9):
            if opt.pvord == 0: ph = [("Q", t+6)]*2 + [("O", t)]*4 + [("Q", t+6)]*2
            elif opt.pvord == 1: ph = [("Q", t+6)]*4 + [("O", t)]*4
            else: ph = [("O", t)]*4 + [("Q", t+6)]*4
            seqv += ph
            idx = max(i for i, x in enumerate(seqv) if x == ("Q", t+3))
            need[t] = len(seqv) - 1 - idx
        steady = need[8]
        if opt.sdma >= 0:
            steady = 12; need = {t: 12 for t in need}
        ts = [t for t in range(1, 8) if (t % 2 == 1) == (pc == 0) and need[t] != steady]
        if ts:
            a(f"s_cmp_gt_u32 {sT}, {ts[-1]}"); a(f"s_cbranch_scc1 L_wS_{pc}")
            for t in reversed(ts[1:]):
                a(f"s_cmp_eq_u32 {sT}, {t}"); a(f"s_cbranch_scc1 L_w{t}_{pc}")
            for k, t in enumerate(ts):
                if k: g.lab(f"L_w{t}_{pc}")
                a(f"s_waitcnt vmcnt({need[t]})")
            g.lab(f"L_wS_{pc}")
        a(f"s_waitcnt vmcnt({steady})")
        barrier()
        if pc == 1: g.lab(f"L_pv_nb{pc}")
        a(f"s_add_u32 {sT}, {sT}, 1")
        if pc == 1: a("s_branch L_pv_loop0")
    g.lab("L_pv_last")
    g.lg = []
    a("s_nop 7")
    E, R, S = epi_fillers(OA[1], vL[1])
    for w_, it in E + R + S: it()
    if opt.stamp: a("s_waitcnt vmcnt(0)")
    dump_stamps()
    if opt.dbg:
        a("s_waitcnt vmcnt(0)")
        a("s_memrealtime s[68:69]"); a("s_memtime s[70:71]"); a("s_waitcnt lgkmcnt(0)")
        a("s_mov_b32 s72, s62"); a("s_mov_b32 s73, s63"); a("s_mov_b32 s74, 256"); a("s_mov_b32 s75, 0x20000")
        a("s_cmp_ge_u32 s2, 8"); a("s_cbranch_scc1 L_end")
        a("s_cmp_lg_u32 s32, 4"); a("s_cbranch_scc1 L_end")
        a("s_sub_u32 s76, s76, s64"); a("s_sub_u32 s68, s68, s64"); a("s_sub_u32 s70, s70, s66")
        a("s_lshl_b32 s70, s70, 12"); a("s_and_b32 s70, s70, 0xffff0000"); a("s_or_b32 s76, s76, s70")
        a("s_lshl_b32 s77, s2, 3")
        a("v_mov_b32 v3, 0"); a("v_mov_b32 v4, s76"); a("v_mov_b32 v5, s68")
        a("s_mov_b64 exec, 1")
        a("buffer_store_dwordx2 v[4:5], v3, s[72:75], s77 offen")
    g.lab("L_end")
    a("s_endpgm")
    if opt.abl:
        ab = opt.abl.split(",")
        out = []; inloop = False; role = None
        for ln in g.o:
            t = ln.strip()
            if t.startswith("L_s_loop0:"): inloop = True; role = "s"
            if t.startswith("L_pv:"): inloop = False
            if t.startswith("L_pv_loop0:"): inloop = True; role = "pv"
            drop = False
            if inloop:
                if "smx" in ab and role == "s" and t.split()[0] in ("v_fma_f32", "v_exp_f32", "v_add_f32", "v_cvt_pk_bf16_f32", "v_max3_f32", "v_max_f32"): drop = True
                if "exp" in ab and role == "s" and t.startswith("v_exp_f32"): drop = True
                if "qrd" in ab and role == "s" and t.startswith("ds_read_b128") and ", v24 " in t: drop = True
                if "prd" in ab and role == "pv" and t.startswith("ds_read_b128") and ", v15 " in t: drop = True
                if "pw" in ab and role == "s" and t.startswith("ds_write_b128"): drop = True
                if "epi" in ab and role == "pv" and (t.split()[0] in ("v_mul_f32", "v_cvt_pk_bf16_f32", "ds_write_b128") or (t.startswith("ds_read_b128") and ", v17 " in t)): drop = True
                if "st" in ab and t.startswith("buffer_store_dwordx4"): drop = True
                if "dma" in ab and t.startswith("buffer_load_dwordx4") and t.endswith("lds"): drop = True
                if "mfs" in ab and role == "s" and t.startswith("v_mfma"): drop = True
                if "mfp" in ab and role == "pv" and t.startswith("v_mfma"): drop = True
            if drop: continue
            if inloop and t.startswith("s_waitcnt lgkmcnt(") and any(x in ab for x in ("qrd", "prd", "pw", "epi")) and "lgkmcnt(0)" not in t:
                ln = "    s_waitcnt lgkmcnt(4)"
            out.append(ln)
        g.o = out
    return HEADER + "\n".join(g.o) + FOOTER

def parser():
    ap = argparse.ArgumentParser()
    ap.add_argument("-o", default="k3.s")
    ap.add_argument("--ld", default="nt"); ap.add_argument("--st", default="nt")
    ap.add_argument("--stamp", type=int, default=0)
    ap.add_argument("--prio_s", type=int, default=0); ap.add_argument("--prio_pv", type=int, default=0)
    ap.add_argument("--skew", type=int, default=0)
    ap.add_argument("--klag", type=int, default=3)
    ap.add_argument("--s_f0", type=int, default=1); ap.add_argument("--s_f1", type=int, default=31)
    ap.add_argument("--pv_f0", type=int, default=0); ap.add_argument("--pv_f1", type=int, default=24)
    ap.add_argument("--wvm", type=float, default=6)
    ap.add_argument("--pvord", type=int, default=0)
    ap.add_argument("--owait", type=int, default=1)
    ap.add_argument("--abl", default=""); ap.add_argument("--dbg", type=int, default=0)
    ap.add_argument("--sdma", type=int, default=-1); ap.add_argument("--sdma_step", type=int, default=4)
    ap.add_argument("--pvpro", default="v0,v1,v2,v3,b2,g0,v4,g1,v5,b5,g2,v6,g3,v7,b6,g4,q4,g5,q5,g6,q6,g7")
    return ap
if __name__ == "__main__":
    opt = parser().parse_args()
    open(opt.o, "w").write(gen(opt))
```

```python
import sys
HDR = """; @launch grid=(256,1,1) block=(512,1,1) lds=%d
.amdgcn_target "amdgcn-amd-amdhsa--gfx950"
.text
.globl standalone__gqa_softmax__near_ridge_kernel
.p2align 8
.type standalone__gqa_softmax__near_ridge_kernel,@function
standalone__gqa_softmax__near_ridge_kernel:
"""
FTR = """
L_end:
s_endpgm
.section .rodata,"a"
.p2align 6
.amdhsa_kernel standalone__gqa_softmax__near_ridge_kernel
  .amdhsa_next_free_vgpr 256
  .amdhsa_next_free_sgpr 102
  .amdhsa_accum_offset 256
  .amdhsa_group_segment_fixed_size 0
  .amdhsa_kernarg_size 48
  .amdhsa_user_sgpr_count 2
  .amdhsa_user_sgpr_kernarg_segment_ptr 1
  .amdhsa_system_sgpr_workgroup_id_x 1
.end_amdhsa_kernel
"""
def gen(ldflag="", stflag="", kv_first=True, nload_kv=32, do_store=True, do_q=True, stamp=False):
    o = []
    a = o.append
    a("s_cmp_ge_u32 s2, 256"); a("s_cbranch_scc1 L_end")
    a("s_load_dwordx4 s[4:7], s[0:1], 0")
    a("s_load_dwordx4 s[8:11], s[0:1], 16")
    a("s_load_dwordx2 s[40:41], s[0:1], 40")
    a("s_memtime s[44:45]"); a("s_memrealtime s[46:47]")
    a("v_lshrrev_b32 v1, 6, v0")
    a("s_nop 0")
    a("v_readfirstlane_b32 s3, v1")
    a("v_and_b32 v2, 63, v0")
    a("v_lshlrev_b32 v2, 4, v2")
    a("s_waitcnt lgkmcnt(0)")
    a("s_lshl_b32 s12, s2, 18")
    a("s_lshl_b32 s13, s2, 17")
    a("s_add_u32 s16, s4, s12"); a("s_addc_u32 s17, s5, 0"); a("s_mov_b32 s18, 262144"); a("s_mov_b32 s19, 0x20000")
    a("s_add_u32 s20, s6, s13"); a("s_addc_u32 s21, s7, 0"); a("s_mov_b32 s22, 131072"); a("s_mov_b32 s23, 0x20000")
    a("s_add_u32 s24, s8, s13"); a("s_addc_u32 s25, s9, 0"); a("s_mov_b32 s26, 131072"); a("s_mov_b32 s27, 0x20000")
    a("s_add_u32 s28, s10, s12"); a("s_addc_u32 s29, s11, 0"); a("s_mov_b32 s30, 262144"); a("s_mov_b32 s31, 0x20000")
    a("s_and_b32 s32, s3, 3"); a("s_lshl_b32 s32, s32, 15")
    a("s_lshl_b32 s33, s3, 15")
    a("s_cmp_ge_u32 s3, 4")
    a("s_cbranch_scc1 L_v")
    for i in range(nload_kv):
        a(f"buffer_load_dwordx4 v[{128+4*i}:{131+4*i}], v2, s[20:23], s32 offen {ldflag}")
        a("s_add_u32 s32, s32, 1024")
    a("s_branch L_q")
    a("L_v:")
    for i in range(nload_kv):
        a(f"buffer_load_dwordx4 v[{128+4*i}:{131+4*i}], v2, s[24:27], s32 offen {ldflag}")
        a("s_add_u32 s32, s32, 1024")
    a("L_q:")
    a("s_mov_b32 s34, s33")
    NQ = 28
    if do_q:
        for i in range(NQ):
            a(f"buffer_load_dwordx4 v[{4+4*i}:{7+4*i}], v2, s[16:19], s34 offen {ldflag}")
            a("s_add_u32 s34, s34, 1024")
        for i in range(32):
            r = i % NQ
            if i < NQ:
                n = (NQ - 1 - i) + sum((1 if do_store else 0) + (1 if j < 32 - NQ else 0) for j in range(i))
            else:
                j0 = i - NQ
                n = sum((1 if do_store else 0) + (1 if j < 32 - NQ else 0) for j in range(j0 + 1, i))
            a(f"s_waitcnt vmcnt({min(n,63)})")
            if do_store:
                a(f"buffer_store_dwordx4 v[{4+4*r}:{7+4*r}], v2, s[28:31], s33 offen {stflag}")
                a("s_add_u32 s33, s33, 1024")
            if i < 32 - NQ:
                a("s_nop 1")
                a(f"buffer_load_dwordx4 v[{4+4*r}:{7+4*r}], v2, s[16:19], s34 offen {ldflag}")
                a("s_add_u32 s34, s34, 1024")
    a("s_waitcnt vmcnt(0)")
    if stamp:
        a("s_memtime s[48:49]"); a("s_memrealtime s[50:51]"); a("s_waitcnt lgkmcnt(0)")
        a("s_mov_b32 s56, s40"); a("s_mov_b32 s57, s41"); a("s_mov_b32 s58, 0x1000000"); a("s_mov_b32 s59, 0x20000")
        a("v_mov_b32 v4, 0"); a("v_mov_b32 v5, 0")
        a("v_writelane_b32 v5, s44, 0"); a("v_writelane_b32 v4, s48, 26"); a("v_writelane_b32 v4, s46, 30"); a("v_writelane_b32 v4, s50, 31")
        a("s_lshl_b32 s60, s2, 12"); a("s_lshl_b32 s61, s3, 9"); a("s_add_u32 s60, s60, s61")
        a("v_lshrrev_b32 v2, 2, v2")
        a("buffer_store_dword v4, v2, s[56:59], s60 offen"); a("buffer_store_dword v5, v2, s[56:59], s60 offen offset:256")
    return HDR % 100000 + "\n".join(o) + FTR
open("st_base.s", "w").write(gen())
open("st_nt.s", "w").write(gen(ldflag="nt", stflag="nt"))
open("st_ntld.s", "w").write(gen(ldflag="nt"))
open("st_ntst.s", "w").write(gen(stflag="nt"))
open("st_nostore.s", "w").write(gen(do_store=False))
open("st_kvonly.s", "w").write(gen(do_q=False))
import itertools
flags = ["", "sc0", "sc1", "sc0 sc1", "nt", "sc0 nt", "sc1 nt", "sc0 sc1 nt"]
names = []
for i, f in enumerate(flags):
    open(f"sl{i}.s", "w").write(gen(ldflag=f, stflag="nt")); names.append(f"sl{i}.s")
for i, f in enumerate(flags):
    open(f"ss{i}.s", "w").write(gen(ldflag="nt", stflag=f)); names.append(f"ss{i}.s")
open("st_empty.s", "w").write(gen(do_q=False, nload_kv=0))
open("st_nostore_nt.s", "w").write(gen(do_store=False, ldflag="nt"))
open("st_kvonly_nt.s", "w").write(gen(do_q=False, ldflag="nt"))
print(" ".join(names))

open("st_nts.s", "w").write(gen(ldflag="nt", stflag="nt", stamp=True))
open("st_nostore_nts.s", "w").write(gen(ldflag="nt", do_store=False, stamp=True))
```

```python
from gen_stream import HDR, FTR
def gen(kvpat="lin", qpat="lin", opat="lin", ldflag="nt", stflag="nt", rot=0, kvrot=0):
    o = []; a = o.append
    a("s_cmp_ge_u32 s2, 256"); a("s_cbranch_scc1 L_end")
    a("s_load_dwordx4 s[4:7], s[0:1], 0"); a("s_load_dwordx4 s[8:11], s[0:1], 16")
    a("v_lshrrev_b32 v1, 6, v0"); a("s_nop 0"); a("v_readfirstlane_b32 s3, v1")
    a("v_and_b32 v2, 63, v0")
    a("v_lshrrev_b32 v3, 3, v2"); a("v_lshlrev_b32 v3, 9, v3"); a("v_and_b32 v1, 7, v2"); a("v_lshl_add_u32 v3, v1, 4, v3")
    a("v_lshlrev_b32 v2, 4, v2")
    a("s_waitcnt lgkmcnt(0)")
    a("s_lshl_b32 s12, s2, 18"); a("s_lshl_b32 s13, s2, 17")
    a("s_add_u32 s16, s4, s12"); a("s_addc_u32 s17, s5, 0"); a("s_mov_b32 s18, 262144"); a("s_mov_b32 s19, 0x20000")
    a("s_add_u32 s20, s6, s13"); a("s_addc_u32 s21, s7, 0"); a("s_mov_b32 s22, 131072"); a("s_mov_b32 s23, 0x20000")
    a("s_add_u32 s24, s8, s13"); a("s_addc_u32 s25, s9, 0"); a("s_mov_b32 s26, 131072"); a("s_mov_b32 s27, 0x20000")
    a("s_add_u32 s28, s10, s12"); a("s_addc_u32 s29, s11, 0"); a("s_mov_b32 s30, 262144"); a("s_mov_b32 s31, 0x20000")
    a("s_and_b32 s35, s3, 3")
    if rot == 0: a("s_mov_b32 s37, 0")
    elif rot == 1: a("s_and_b32 s37, s2, 15"); a("s_lshl_b32 s37, s37, 14")
    elif rot == 2: a("s_lshr_b32 s37, s2, 3"); a("s_and_b32 s37, s37, 15"); a("s_lshl_b32 s37, s37, 14")
    elif rot == 3: a("s_lshr_b32 s37, s2, 4"); a("s_xor_b32 s37, s37, s2"); a("s_and_b32 s37, s37, 15"); a("s_lshl_b32 s37, s37, 14")
    elif rot == 6: a("s_and_b32 s37, s2, 7"); a("s_lshl_b32 s37, s37, 15")
    elif rot == 7: a("s_lshr_b32 s37, s2, 3"); a("s_and_b32 s37, s37, 7"); a("s_lshl_b32 s37, s37, 15")
    elif rot == 8: a("s_lshr_b32 s37, s2, 5"); a("s_and_b32 s37, s37, 7"); a("s_lshl_b32 s37, s37, 15")
    elif rot == 4: a("s_and_b32 s37, s2, 31"); a("s_lshl_b32 s37, s37, 13")
    elif rot == 5: a("s_mul_i32 s37, s2, 5"); a("s_and_b32 s37, s37, 31"); a("s_lshl_b32 s37, s37, 13")
    if kvrot: a("s_lshr_b32 s38, s37, 1")
    else: a("s_mov_b32 s38, 0")
    a("s_cmp_ge_u32 s3, 4"); a("s_cbranch_scc1 L_v")
    def offs(pat, i, nblk_bytes):
        pass
    for role, srd in (("k", "s[20:23]"), ("v", "s[24:27]")):
        if role == "v": a("L_v:")
        for i in range(32):
            if kvpat == "lin":
                a(f"s_lshl_b32 s32, s35, 15"); a(f"s_add_u32 s32, s32, {1024*i}"); vr_ = "v2"
            elif kvpat == "col":
                a(f"s_lshl_b32 s32, s35, 7"); a(f"s_add_u32 s32, s32, {4096*i}"); vr_ = "v3"
            elif kvpat == "k0":
                kb, cg, ii = i // 16, (i // 4) % 4, i % 4
                a(f"s_lshl_b32 s32, s35, 15"); a(f"s_add_u32 s32, s32, {kb*16384 + ii*4096 + cg*128}"); vr_ = "v3"
            elif kvpat == "k1":
                kb, ii, cg = i // 16, (i // 4) % 4, i % 4
                a(f"s_lshl_b32 s32, s35, 15"); a(f"s_add_u32 s32, s32, {kb*16384 + ii*4096 + cg*128}"); vr_ = "v3"
            a("s_add_u32 s32, s32, s38"); a("s_and_b32 s32, s32, 0x1ffff")
            a(f"buffer_load_dwordx4 v[{128+4*i}:{131+4*i}], {vr_}, {srd}, s32 offen {ldflag}")
        if role == "k": a("s_branch L_q")
    a("L_q:")
    NQ = 28
    def qoff(pat, i):
        v = qoff0(pat, i)
        a("s_add_u32 s32, s32, s37"); a("s_and_b32 s32, s32, 0x3ffff")
        return v
    def qoff0(pat, i):
        if pat == "lin":
            a(f"s_lshl_b32 s32, s3, 15"); a(f"s_add_u32 s32, s32, {1024*i}"); return "v2"
        if pat == "tile":
            a(f"s_lshl_b32 s32, s3, 10"); a(f"s_add_u32 s32, s32, {8192*i}"); return "v2"
        if pat == "t4":
            a(f"s_lshl_b32 s32, s3, 12"); a(f"s_add_u32 s32, s32, {32768*(i//4) + 1024*(i%4)}"); return "v2"
        if pat == "t2":
            a(f"s_lshl_b32 s32, s3, 11"); a(f"s_add_u32 s32, s32, {16384*(i//2) + 1024*(i%2)}"); return "v2"
        if pat == "col4":
            a(f"s_lshl_b32 s32, s35, 7"); a(f"s_lshr_b32 s36, s3, 2"); a("s_lshl_b32 s36, s36, 14"); a("s_add_u32 s32, s32, s36"); a(f"s_add_u32 s32, s32, {32768*(i//4) + 4096*(i%4)}"); return "v3"
        if pat == "col":
            a(f"s_lshl_b32 s32, s35, 7"); a(f"s_lshr_b32 s36, s3, 2"); a("s_lshl_b32 s36, s36, 12"); a("s_add_u32 s32, s32, s36"); a(f"s_add_u32 s32, s32, {8192*i}"); return "v3"
    for i in range(NQ):
        v = qoff(qpat, i); a(f"buffer_load_dwordx4 v[{4+4*i}:{7+4*i}], {v}, s[16:19], s32 offen {ldflag}")
    for i in range(32):
        r = i % NQ
        if i < NQ: n = (NQ - 1 - i) + sum(1 + (1 if j < 32 - NQ else 0) for j in range(i))
        else: n = sum(1 + (1 if j < 32 - NQ else 0) for j in range(i - NQ + 1, i))
        a(f"s_waitcnt vmcnt({min(n,63)})")
        v = qoff(opat, i); a(f"buffer_store_dwordx4 v[{4+4*r}:{7+4*r}], {v}, s[28:31], s32 offen {stflag}")
        if i < 32 - NQ:
            v = qoff(qpat, NQ + i); a(f"buffer_load_dwordx4 v[{4+4*r}:{7+4*r}], {v}, s[16:19], s32 offen {ldflag}")
    a("s_waitcnt vmcnt(0)")
    return HDR % 100000 + "\n".join(o) + FTR
V = {"x0": dict(kvpat="col", qpat="t4", opat="col4")}
for r in (6, 7, 8):
    V[f"r{r}"] = dict(kvpat="col", qpat="t4", opat="col4", rot=r)
    V[f"r{r}k"] = dict(kvpat="col", qpat="t4", opat="col4", rot=r, kvrot=1)
V["x1"] = dict(kvpat="col", qpat="t4", opat="col4")
V["lin"] = dict()
names = []
for k, kw in V.items():
    nm = f"s2_{k}.s"; open(nm, "w").write(gen(**kw)); names.append(nm)
open("s2_list.txt", "w").write(" ".join(names))
```
